```python
import torch

def _softmax(x, axis=-1):
    return torch.softmax(x, dim=axis)
def _gelu(x):
    return torch.nn.functional.gelu(x, approximate="tanh")
def _silu(x):
    return torch.nn.functional.silu(x)
def _sigmoid(x):
    return torch.sigmoid(x)
def _layernorm(x, axis=-1, eps=1e-5):
    m = x.mean(dim=axis, keepdim=True)
    v = x.var(dim=axis, keepdim=True, unbiased=False)
    return (x - m) / torch.sqrt(v + eps)
def _scatter_add(tgt, idx, src, axis=0):
    return tgt.clone().index_add_(axis, idx, src)
def _segment_sum(src, seg, n):
    out = torch.zeros((n,) + src.shape[1:], dtype=src.dtype)
    return out.index_add_(0, seg, src)
def _pad(x, pw):
    flat = tuple(v for pair in reversed(pw) for v in pair)
    return torch.nn.functional.pad(x, flat)

kernel_name = 'recurrent_scan__linear_attn_block__glu_gated_glu__prompt'

def setup_inputs():

    _w = (lambda a: (lambda t: t.to(torch.bfloat16) if t.is_floating_point() else t)(torch.as_tensor(a)))
    def _A_setup():
        B, S, D = 1, 2048, 512
        return {
            "x": _w((lambda *s: torch.randn(*s, dtype=torch.bfloat16) * 0.05)(B, S, D)),
            "wqkv": _w((lambda *s: torch.randn(*s, dtype=torch.bfloat16) * 0.05)(D, 3 * D)),
            "wo": _w((lambda *s: torch.randn(*s, dtype=torch.bfloat16) * 0.05)(D, D)),
        }
    _A_in = _A_setup()

    def _B_setup():
        B, S, D, F = 1, 2048, 512, 1792
        return {
            "x": _w((lambda *s: torch.randn(*s, dtype=torch.bfloat16) * 0.05)(B, S, D)),
            "w_gate": _w((lambda *s: torch.randn(*s, dtype=torch.bfloat16) * 0.05)(D, F)),
            "w_up": _w((lambda *s: torch.randn(*s, dtype=torch.bfloat16) * 0.05)(D, F)),
            "w_down": _w((lambda *s: torch.randn(*s, dtype=torch.bfloat16) * 0.05)(F, D)),
        }
    _B_in = _B_setup()

    return {
        "A_x": _A_in["x"],
        "A_wqkv": _A_in["wqkv"],
        "A_wo": _A_in["wo"],
        "B_x": _B_in["x"],
        "B_w_gate": _B_in["w_gate"],
        "B_w_up": _B_in["w_up"],
        "B_w_down": _B_in["w_down"],
    }

def reference(A_x, A_wqkv, A_wo, B_x, B_w_gate, B_w_up, B_w_down):
    def _A_ref(x, wqkv, wo):
        B, S, D = x.shape
        H = 32; Dh = D // H
        qkv = (lambda x, *d: x.permute(*d))((x @ wqkv).reshape(B, S, 3, H, Dh), 2, 0, 3, 1, 4)
        q, k, v = qkv[0], qkv[1], qkv[2]
        phi = lambda t: torch.where(t > 0, t + 1, torch.exp(t)) + 1e-6
        pq, pk = phi(q), phi(k)
        kv = torch.einsum("bhsd,bhse->bhde", pk, v)
        z = torch.einsum("bhsd->bhd", pk)
        num = torch.einsum("bhqd,bhde->bhqe", pq, kv)
        den = torch.einsum("bhqd,bhd->bhq", pq, z)[..., None] + 1e-6
        o = num / den
        return (lambda x, *d: x.permute(*d))(o, 0, 2, 1, 3).reshape(B, S, D) @ wo

    def _B_ref(x, w_gate, w_up, w_down):
        g = torch.einsum("bsd,df->bsf", x, w_gate)
        u = torch.einsum("bsd,df->bsf", x, w_up)
        h = _sigmoid(g) * u
        return torch.einsum("bsf,fd->bsd", h, w_down)

    x = A_x
    xn = _layernorm(x, axis=-1)
    s = _A_ref(xn, A_wqkv, A_wo)
    g = _silu(_B_ref(xn, B_w_gate, B_w_up, B_w_down))
    return x + s * g
```

```python
import re

REG_RE = re.compile(r"\b([vas])(\d+)\b|\b([vas])\[(\d+):(\d+)\]|\b(vcc|exec|m0)\b")
TRANS = ("v_exp_f32", "v_log_f32", "v_rcp_f32", "v_rsq_f32", "v_sqrt_f32", "v_sin_f32", "v_cos_f32")

def regs_of(op):
    out = set()
    for m in REG_RE.finditer(op):
        if m.group(1): out.add((m.group(1), int(m.group(2))))
        elif m.group(3):
            for i in range(int(m.group(4)), int(m.group(5))+1): out.add((m.group(3), i))
        else: out.add((m.group(6), 0))
    return out

def split_ops(s):
    ops, cur, d = [], "", 0
    for ch in s:
        if ch == "[": d += 1
        if ch == "]": d -= 1
        if ch == "," and d == 0: ops.append(cur.strip()); cur = ""
        else: cur += ch
    if cur.strip(): ops.append(cur.strip())
    return ops

class Ins:
    def __init__(self, text):
        self.text = text
        t = text.split(";")[0].strip()
        parts = t.split(None, 1)
        self.mn = mn = parts[0]
        ops = split_ops(parts[1]) if len(parts) > 1 else []
        self.ops = ops
        R = [regs_of(o) for o in ops]
        allr = lambda l: set().union(*l) if l else set()
        self.w, self.r = set(), set()
        self.kind = "other"; self.srcc = set(); self.srcab = set(); self.wide = False; self.data = set()
        self.dpp = any(k in t for k in ("row_shr", "row_ror", "row_bcast", "quad_perm", "row_shl", "row_mirror", "row_half_mirror"))
        self.states = 1
        if mn.startswith("v_mfma"):
            self.kind = "mfma"; self.w = R[0]; self.srcab = R[1] | R[2]; self.srcc = R[3]; self.r = self.srcab | self.srcc
            self.passes = 8 if "32x32" in mn else 4
        elif mn.startswith("v_"):
            self.kind = "trans" if mn.startswith(TRANS) else ("dot" if mn.startswith("v_dot") else "valu")
            self.w = R[0]; self.r = allr(R[1:])
            if mn.startswith(("v_fmac", "v_dot2c")) or self.dpp: self.r |= R[0]
            if mn.startswith("v_permlane"): self.w = R[0] | R[1]; self.r = R[0] | R[1]
            if mn.startswith("v_cndmask") and len(ops) == 3: self.r.add(("vcc", 0))
        elif mn.startswith("ds_read"):
            self.kind = "ds"; self.w = R[0]; self.r = allr(R[1:])
        elif mn.startswith("ds_"):
            self.kind = "ds"; self.r = allr(R)
        elif mn.startswith(("buffer_load", "global_load")):
            self.kind = "vmem"
            if re.search(r"\blds\b", t): self.r = allr(R) | {("m0", 0)}; self.isdma = True
            else: self.w = R[0]; self.r = allr(R[1:])
        elif mn.startswith(("buffer_store", "global_store", "buffer_atomic")):
            self.kind = "vmem"; self.r = allr(R)
            if "x4" in mn or "x3" in mn: self.wide = True; self.data = R[0]
        elif mn.startswith("s_load"):
            self.kind = "smem"; self.w = R[0]; self.r = allr(R[1:])
        elif mn == "s_nop":
            self.kind = "nop"; self.states = int(ops[0]) + 1
        elif mn.startswith(("s_waitcnt", "s_barrier", "s_branch", "s_cbranch", "s_endpgm", "s_setprio", "s_sleep")):
            self.kind = "ctl"
        elif mn.startswith(("s_cmp", "s_bitcmp")):
            self.kind = "salu"; self.r = allr(R)
        elif mn.startswith(("s_memtime", "s_memrealtime")):
            self.kind = "smem"; self.w = R[0]
        elif mn.startswith("s_"):
            self.kind = "salu"; self.w = R[0]; self.r = allr(R[1:])
            if "saveexec" in mn: self.w |= {("exec", 0)}
        else:
            raise ValueError("unknown instr " + text)

def isv(k): return k in ("valu", "trans", "dot")

def required(p, c):
    need = 0
    vw = {x for x in p.w if x[0] in "va"}
    sw = {x for x in p.w if x[0] in ("s", "vcc")}
    if isv(p.kind):
        if c.kind == "mfma" and vw & c.r: need = max(need, 2)
        if isv(c.kind):
            if c.mn.startswith("v_permlane") and vw & c.r: need = max(need, 2)
            if c.dpp and vw & c.r: need = max(need, 2)
            if c.mn.startswith(("v_readfirstlane", "v_readlane")) and vw & c.r: need = max(need, 1)
            if sw & c.r: need = max(need, 2)
            if p.kind == "trans" and c.kind != "trans" and vw & c.r: need = max(need, 1)
            if p.kind == "dot" and vw & (c.r | c.w):
                if not (c.mn == p.mn and not (vw & (c.r - c.w))): need = max(need, 3)
        if c.kind == "vmem" and sw & c.r: need = max(need, 5)
        if c.kind in ("salu", "smem") and sw & c.r: need = max(need, 2)
        if p.kind == "dot" and c.kind in ("vmem", "ds", "mfma") and vw & c.r: need = max(need, 3)
    if p.kind == "mfma":
        big = 12 if p.passes == 8 else 8
        if c.kind == "mfma":
            if p.w & c.srcab: need = max(need, big)
            if p.w & c.srcc and not (p.w == c.srcc and p.passes == c.passes): need = max(need, big-2)
            if p.w & c.w and not (p.w == c.srcc): need = max(need, big-2)
        elif isv(c.kind) or c.kind in ("vmem", "ds"):
            if p.w & (c.r | c.w): need = max(need, big)
        if isv(c.kind) and p.srcc & c.w: need = max(need, 7 if p.passes == 8 else 3)
    if p.kind == "salu" and ("m0", 0) in p.w and c.kind == "vmem" and ("m0", 0) in c.r: need = max(need, 1)
    if p.wide and p.data & c.w: need = max(need, 2)
    return need

class Stream:
    def __init__(self):
        self.out = []
        self.hist = []
        self.nvm = 0; self.nlg = 0
        self.nops = 0
        self.count = 0
        self.lab = 0
        self.bytes_est = 0
    def raw(self, text):
        self.out.append(text)
    def label(self, name, reset=True):
        self.out.append(name + ":")
    def newlabel(self, p="L"):
        self.lab += 1
        return f"{p}_{self.lab}"
    def comment(self, t): self.out.append("    ; " + t)
    def __call__(self, text):
        last = None
        for l in text.split("\n"):
            if l.strip(): last = self.emit(l.strip())
        return last
    def pad_needed(self, ins):
        dist = 0; need = 0
        for p in reversed(self.hist):
            need = max(need, required(p, ins) - dist)
            dist += p.states
            if dist >= 20: break
        return need
    def emit(self, text):
        ins = Ins(text)
        need = self.pad_needed(ins)
        if need > 0:
            n = Ins(f"s_nop {need-1}")
            self.out.append(f"    s_nop {need-1}"); self.hist.append(n); self.nops += need
        self.out.append("    " + text)
        self.hist.append(ins); self.hist = self.hist[-24:]
        self.count += 1
        if ins.kind == "vmem": self.nvm += 1; ins.vmseq = self.nvm
        if ins.kind == "ds": self.nlg += 1; ins.lgseq = self.nlg
        return ins
    def wait(self, vm=None, lg=None):
        parts = []
        if vm is not None:
            n = vm if isinstance(vm, int) else self.nvm - vm.vmseq
            parts.append(f"vmcnt({min(n,63)})")
        if lg is not None:
            n = lg if isinstance(lg, int) else self.nlg - lg.lgseq
            parts.append(f"lgkmcnt({min(n,15)})")
        return self.emit("s_waitcnt " + " ".join(parts))
    def flush_hazards(self):
        self.emit("s_nop 11")
    def text(self):
        return "\n".join(self.out) + "\n"
```

```python
import sys, math
from emit import Stream

NAME = "recurrent_scan__linear_attn_block__glu_gated_glu__prompt_kernel"

EPOCH, STATS, FLAGA, FLAGB, KVFLAG = 0, 0x1000, 0x5000, 0x7000, 0x9000
COLSUM, KV, STAMP, SMALL = 0x10000, 0x40000, 0xC0000, 0x100000
H_OFF, TBB = 0x200000, 144*2048
H_BYTES = 32*TBB
OOB = 0x40000000
NSLOT, SLOT, XTRA = 9, 16384, 147456
LDS_BYTES = 163840
SX, SQ, SG, SU, SW, SO, SS, SH, SC = 24, 28, 32, 36, 40, 44, 48, 52, 56
sW, sTG, sCH, sRB, sJ, sTAG, sEP, sTB, sCT = 60, 61, 62, 63, 64, 65, 66, 67, 68
sOX, sOW, sMW, sLN2, sOH, sOF, sT0, sT1, sT2, sT3 = 69, 70, 71, 72, 73, 74, 75, 76, 77, 78
sCS = 79
sPO, sPP, sPS = 84, 85, 86
sOW2, sOW2B, sHA, sHB, sHB6, sFA, sFB, sKV, sKF, sEO, sCNT = 87, 88, 89, 90, 91, 92, 93, 94, 95, 96, 97
sST = 98
def srd(n): return f"s[{n}:{n+3}]"
vL, vL16 = 1, 2
VX, VW, XA, WA = 4, 8, 12, 16
vSV, vG0, vG1, vQ0, vQ1, vE3 = 18, 19, 20, 21, 22, 23
CS = 24
ST = 44
MF = 48
vC, vD = 56, 58
KF = 60
TMP = 64
WB = 96
ACCA, ACCB = 128, 192
vDT, vBT, vCK, vLT, vPFD = 3, 0, 15, 80, 255
sDT, sBT, sMK = 3, 0, 10
def v(b, n=1): return f"v{b}" if n == 1 else f"v[{b}:{b+n-1}]"
def a(b, n=1): return f"a{b}" if n == 1 else f"a[{b}:{b+n-1}]"
LOG2E = 0x3fb8aa3b; LN2 = 0x3f317218
import struct
def f2u(x): return struct.unpack("<I", struct.pack("<f", x))[0]
MF32 = "v_mfma_f32_32x32x16_bf16"

class Opt:
    stamps = False
    dma_rate = {1: 0.62, 2: 0.40, 3: 0.40}
    budget = {1: 5, 2: 5, 3: 5}
    spin = 20000
    code_pf = True
OPT = Opt()

class Gate:
    def __init__(self, fn): self.fn = fn

class Gen:
    def __init__(self):
        self.s = Stream()
        self.tailblocks = []
        self.nstamp = 0
    def stamp(self, i):
        if not OPT.stamps: return
        s = self.s
        s(f"s_memrealtime s[{sST}:{sST+1}]")
        s("s_waitcnt lgkmcnt(0)")
        s(f"v_mov_b32 v{vBT}, s{sST}")
        s(f"s_lshl_b32 s{sST}, s2, 2\ns_add_u32 s{sST}, s{sST}, s{sW}\ns_lshl_b32 s{sST}, s{sST}, 8\ns_add_u32 s{sST}, s{sST}, {STAMP+4*i}")
        s(f"buffer_store_dword v{vBT}, off, {srd(SS)}, s{sST}")
    def check(self, pairs, reloads, name):
        s = self.s
        t = vCK
        def cmpseq(em):
            first = True
            for (r, e) in pairs:
                if first: em(f"v_xor_b32 v{t}, {e}, v{r}"); first = False
                else: em(f"v_bitop3_b32 v{t}, v{t}, v{r}, {e} bitop3:0xf6")
            em(f"v_cmp_ne_u32 vcc, 0, v{t}")
        lr, lb = f"L_retry_{name}", f"L_back_{name}"
        seq = []
        cmpseq(seq.append)
        for x in seq:
            s(x); yield
        s(f"s_cbranch_vccnz {lr}")
        s.label(lb)
        b = Stream()
        b.label(lr)
        b(f"s_mov_b32 s{sCNT}, {OPT.spin}")
        b.label(lr + "_loop")
        b("s_nop 4")
        for x in reloads: b(x)
        b("s_waitcnt vmcnt(0)")
        cmpseq(b)
        b(f"s_cbranch_vccz {lb}")
        b(f"s_sub_u32 s{sCNT}, s{sCNT}, 1\ns_cmp_lg_u32 s{sCNT}, 0")
        b(f"s_cbranch_scc1 {lr}_loop")
        b(f"s_branch {lb}")
        self.tailblocks.append(b.text())
        yield

    def prologue(self):
        s = self.s
        s("s_cmp_ge_u32 s2, 256")
        s("s_cbranch_scc1 L_exit")
        s("s_load_dwordx16 s[4:19], s[0:1], 0")
        s("s_load_dwordx4 s[20:23], s[0:1], 64")
        s(f"v_lshrrev_b32 v{vDT}, 6, v0")
        s(f"v_and_b32 v{vL}, 63, v0")
        s(f"v_readfirstlane_b32 s{sW}, v{vDT}")
        s(f"s_lshr_b32 s{sT0}, s2, 3")
        if OPT.code_pf:
            s(f"s_getpc_b64 s[{sST}:{sST+1}]")
            s(f"s_lshl_b32 s{sT1}, s{sT0}, 2\ns_add_u32 s{sT1}, s{sT1}, s{sW}\ns_mul_i32 s{sT1}, s{sT1}, {OPT.pf_lines*128}")
            s(f"v_min_u32 v{vDT}, {OPT.pf_lines-1}, v{vL}\nv_lshlrev_b32 v{vDT}, 7, v{vDT}\nv_add_u32 v{vDT}, s{sT1}, v{vDT}")
            s(f"v_min_u32 v{vDT}, L_codeend-{NAME}-256, v{vDT}")
            s(f"s_and_b32 s{sST}, s{sST}, 0xffffff80")
            s(f"global_load_dword v{vPFD}, v{vDT}, s[{sST}:{sST+1}]")
        s(f"v_lshlrev_b32 v{vL16}, 4, v{vL}")
        s(f"s_lshr_b32 s{sTG}, s{sW}, 1\ns_and_b32 s{sCH}, s{sW}, 1\ns_lshl_b32 s{sMW}, s{sW}, 12")
        s(f"s_and_b32 s{sRB}, s2, 1\ns_lshl_b32 s{sRB}, s{sRB}, 3\ns_and_b32 s{sT1}, s{sT0}, 7\ns_or_b32 s{sRB}, s{sRB}, s{sT1}")
        s(f"s_and_b32 s{sJ}, s2, 6\ns_bfe_u32 s{sT1}, s{sT0}, 0x10003\ns_or_b32 s{sJ}, s{sJ}, s{sT1}")
        T = TMP
        s(f"v_lshrrev_b32 v{T}, 3, v{vL}\nv_and_b32 v{T+1}, 7, v{vL}\nv_lshrrev_b32 v{T+2}, 4, v{vL}")
        s(f"v_xor_b32 v{T+3}, v{T+1}, v{T+2}\nv_lshlrev_b32 v{T+3}, 4, v{T+3}")
        s(f"v_lshl_add_u32 v{VX}, v{T}, 10, v{T+3}")
        s(f"v_xor_b32 v{VX+1}, 64, v{VX}\nv_add_u32 v{VX+1}, 7168, v{VX+1}")
        s(f"v_add_u32 v{VX+2}, {2*7168}, v{VX}\nv_add_u32 v{VX+3}, {2*7168}, v{VX+1}")
        s(f"v_lshrrev_b32 v{T+4}, 5, v{vL}\nv_and_b32 v{T+5}, 31, v{vL}\nv_lshlrev_b32 v{T+5}, 4, v{T+5}\nv_lshl_add_u32 v{T+5}, v{T+4}, 10, v{T+5}")
        s(f"s_lshr_b32 s{sT2}, s{sT0}, 4\ns_lshl_b32 s{sT2}, s{sT2}, 3\ns_add_u32 s{sT2}, s{sT2}, s{sJ}\ns_lshl_b32 s{sT2}, s{sT2}, 2\ns_add_u32 s{sT2}, s{sT2}, s{sW}\ns_lshl_b32 s{sT2}, s{sT2}, 1")
        s(f"s_lshl_b32 s{sT3}, s{sRB}, 7\ns_add_u32 s{sT2}, s{sT2}, s{sT3}")
        s(f"s_lshl_b32 s{sOF}, s{sT2}, 10")
        s(f"s_lshl_b32 s{sOX}, s{sW}, 5\ns_add_u32 s{sOX}, s{sOX}, s{sT3}\ns_lshl_b32 s{sOX}, s{sOX}, 10")
        s("s_waitcnt lgkmcnt(0)")
        s(f"s_load_dword s{sEP}, s[22:23], {EPOCH}")
        def mk(n, p, size): s(f"s_mov_b32 s{n}, s{p}\ns_mov_b32 s{n+1}, s{p+1}\ns_mov_b32 s{n+2}, {size}\ns_mov_b32 s{n+3}, 0x20000")
        mk(SX, 4, 0x200000)
        self.ld_st = [s(f"buffer_load_dwordx4 {v(T+8,4)}, v{T+5}, {srd(SX)}, s{sOF} offen"),
                      s(f"buffer_load_dwordx4 {v(T+12,4)}, v{T+5}, {srd(SX)}, s{sOF} offen offset:512")]
        s(f"s_mov_b32 m0, s{sMW}")
        for n in range(4): self.x0last = s(f"buffer_load_dwordx4 v{VX+n}, {srd(SX)}, s{sOX} offen offset:{n*1024} lds")
        s(f"s_add_u32 s{sOX}, s{sOX}, 128")
        mk(SQ, 6, 1572864); mk(SG, 12, 1835008); mk(SU, 14, 1835008); mk(SS, 22, SMALL)
        s(f"s_lshl_b32 s{sT2}, s{sT2}, 3\ns_add_u32 s{sOF}, s{sT2}, {STATS}")
        s(f"s_cmp_ge_u32 s{sT0}, 16")
        s("s_cbranch_scc1 L_typeQ")

    def wpattern(self, kind):
        T = vDT
        if kind in ("glu", "kv"):
            P = 3584 if kind == "glu" else 3072
            sh = 1024 if kind == "kv" else 0
            return [f"v_lshrrev_b32 v{T}, 2, v{vL}", f"v_and_b32 v{T}, 4, v{T}", f"v_xor_b32 v{T}, v{T}, v{vL}", f"v_and_b32 v{T}, 7, v{T}", f"v_lshlrev_b32 v{T}, 4, v{T}",
                    f"v_lshrrev_b32 v{VW}, 3, v{vL}", f"v_mul_u32_u24 v{VW}, {P}, v{VW}", f"v_add_u32 v{VW}, v{VW}, v{T}",
                    f"v_add_u32 v{VW+1}, {8*P-1024}, v{VW}", f"v_xor_b32 v{VW+2}, 32, v{VW}"] + ([f"v_add_u32 v{VW+2}, {sh}, v{VW+2}"] if sh else []) + [f"v_add_u32 v{VW+3}, {8*P-1024}, v{VW+2}"]
        if kind in ("q", "w2"):
            P = 3072 if kind == "q" else 1024
            R = VW if kind == "q" else VX
            return [f"v_lshrrev_b32 v{T}, 2, v{vL}", f"v_and_b32 v{T}, 4, v{T}", f"v_xor_b32 v{T}, v{T}, v{vL}", f"v_and_b32 v{T}, 7, v{T}", f"v_lshlrev_b32 v{T}, 4, v{T}",
                    f"v_lshrrev_b32 v{R}, 3, v{vL}", f"v_mul_u32_u24 v{R}, {P}, v{R}", f"v_add_u32 v{R}, v{R}, v{T}"] + [f"v_add_u32 v{R+n}, {n*(8*P-1024)}, v{R}" for n in (1, 2, 3)]
        if kind == "half":
            P = 3584
            return [f"v_and_b32 v{T}, 3, v{vL}", f"v_lshlrev_b32 v{T}, 4, v{T}", f"v_lshrrev_b32 v{VW}, 2, v{vL}", f"v_mul_u32_u24 v{VW}, {P}, v{VW}", f"v_add_u32 v{VW}, v{VW}, v{T}",
                    f"v_add_u32 v{VW+1}, {16*P-1024}, v{VW}", f"v_xor_b32 v{VW+2}, 32, v{VW}", f"v_add_u32 v{VW+3}, {16*P-1024}, v{VW+2}"]


    def rdpattern(self, kind):
        T = vBT
        o = [f"v_bfe_u32 v{T}, v{vL}, 2, 2", f"v_lshrrev_b32 v{WA+1}, 5, v{vL}"]
        if kind == "w2": o += [f"v_lshl_add_u32 v{T}, v{WA+1}, 2, v{T}"]
        else: o += [f"v_lshl_add_u32 v{T}, v{WA+1}, 3, v{T}"]
        if kind == "half":
            o += [f"v_lshlrev_b32 v{WA}, 6, v{T}", f"v_bfe_u32 v{T}, v{vL}, 4, 1", f"v_lshl_add_u32 v{WA}, v{T}, 11, v{WA}",
                  f"v_xor_b32 v{T}, s{sCH}, v{T}", f"v_lshl_add_u32 v{WA}, v{T}, 5, v{WA}"]
        else:
            o += [f"v_lshlrev_b32 v{WA}, 7, v{T}", f"v_and_b32 v{T}, 2, v{T}", f"v_bfe_u32 v{WA+1}, v{vL}, 4, 1", f"v_xor_b32 v{T}, v{T}, v{WA+1}"]
            if kind == "glu": o += [f"v_lshl_add_u32 v{WA}, v{WA+1}, 11, v{WA}"]
            if kind != "w2": o += [f"s_lshl_b32 s{sBT}, s{sCH}, 1", f"v_xor_b32 v{T}, s{sBT}, v{T}"]
            o += [f"v_lshl_add_u32 v{WA}, v{T}, 5, v{WA}"]
        o += [f"v_and_b32 v{T}, 3, v{vL}", f"v_lshl_add_u32 v{WA}, v{T}, 3, v{WA}"]
        if kind == "glu": o += [f"v_xor_b32 v{WA+1}, 32, v{WA}"]
        if kind == "kv": o += [f"v_xor_b32 v{WA+1}, 32, v{WA}", f"v_add_u32 v{WA+1}, 2048, v{WA+1}"]
        if kind == "w2": o += [f"v_add_u32 v{WA}, s{sMW}, v{WA}", f"v_xor_b32 v{WA+1}, 64, v{WA}"]
        return o

    def dma_task(self, typ):
        s = self.s
        items = []
        for st in range(8):
            if st: items.append(("x", st))
            items.append(("w1", st))
            if st == OPT.gran_after: items.append(("gran", 0))
        for st in range(8, 16): items.append(("w2p", st))
        for st in range(16, 20): items.append(("w3", st))
        for c in range(19): items.append(("v2", c))
        for kind, st in items:
            if kind == "gran":
                yield Gate(lambda: self.gran_ready)
                for t in self.gran_loads: self.ld_gran = s(t); yield "d"
                continue
            if kind == "w2p" and st == 8:
                if typ == "H":
                    for t in self.wpattern("glu"): s(t); yield "c"
                s(f"s_mul_i32 s{sOW}, s{sJ}, 384"); yield "c"
                s(f"s_mul_i32 s{sDT}, s{sW}, {16*3584}"); yield "c"
                s(f"s_add_u32 s{sOW}, s{sOW}, s{sDT}"); yield "c"
                s(f"s_add_u32 s{sOW}, s{sOW}, {256 if typ=='H' else 128}"); yield "c"
            if kind == "w3" and st == 16:
                for t in self.wpattern("half" if typ == "H" else "q"): s(t); yield "c"
                if typ == "H":
                    s(f"s_lshl_b32 s{sOW}, s{sJ}, 6"); yield "c"
                    s(f"s_mul_i32 s{sDT}, s{sW}, {32*3584}"); yield "c"
                    s(f"s_add_u32 s{sOW}, s{sOW}, s{sDT}"); yield "c"
                    s(f"s_add_u32 s{sOW}, s{sOW}, {24*128}"); yield "c"
                else:
                    s(f"s_lshl_b32 s{sOW}, s{sJ}, 7"); yield "c"
                    s(f"s_mul_i32 s{sDT}, s{sW}, {32*3072}"); yield "c"
                    s(f"s_add_u32 s{sOW}, s{sOW}, s{sDT}"); yield "c"
            if kind == "v2" and st == 0:
                for t in self.wpattern("w2"): s(t); yield "c"
            if kind == "v2" and st == 16:
                s(f"s_mov_b32 s{sOW2}, s{sOW2B}"); yield "c"
            yield Gate(lambda: len(self.free) > 0)
            slot = self.free.pop(0)
            self.slot_of[(kind, st)] = slot
            s(f"s_add_u32 m0, s{sMW}, {slot*SLOT}"); yield "c"
            if kind == "x":
                for n in range(4):
                    last = s(f"buffer_load_dwordx4 v{VX+n}, {srd(SX)}, s{sOX} offen offset:{n*1024} lds"); yield "d"
                s(f"s_add_u32 s{sOX}, s{sOX}, 128"); yield "c"
            elif kind == "v2":
                for n in range(4):
                    last = s(f"buffer_load_dwordx4 v{VX+n}, {srd(SW)}, s{sOW2} offen offset:{n*1024} lds"); yield "d"
                s(f"s_add_u32 s{sOW2}, s{sOW2}, {32*1024}"); yield "c"
            elif kind == "w3" and typ == "Q":
                for n in range(4):
                    last = s(f"buffer_load_dwordx4 v{VW+n}, {srd(SQ)}, s{sOW} offen offset:{n*1024} lds"); yield "d"
                s(f"s_add_u32 s{sOW}, s{sOW}, {128*3072}"); yield "c"
            else:
                kv = (kind == "w1" and typ == "H")
                sa, sb = (SQ, SQ) if kv else (SG, SU)
                step = 64*3072 if kv else (128*3584 if kind == "w3" else 64*3584)
                for n in range(4):
                    if n == 2: s(f"s_add_u32 m0, s{sMW}, {slot*SLOT+2048}"); yield "c"
                    last = s(f"buffer_load_dwordx4 v{VW+n}, {srd(sa if n < 2 else sb)}, s{sOW} offen offset:{(n&1)*1024} lds"); yield "d"
                s(f"s_add_u32 s{sOW}, s{sOW}, {step}"); yield "c"
            self.last_of[(kind, st)] = last

    def dma_step(self, force_item=None, max_d=None):
        spent = 0
        while self.dma is not None:
            if force_item is not None:
                if force_item in self.last_of: break
            elif max_d is not None and max_d <= 0: break
            if self.dma_gate is not None:
                if not self.dma_gate.fn():
                    assert force_item is None, f"DMA blocked while forcing {force_item}"
                    break
                self.dma_gate = None
            try: r = next(self.dma)
            except StopIteration: self.dma = None; break
            if isinstance(r, Gate): self.dma_gate = r; continue
            spent += 1
            if r == "d" and max_d is not None: max_d -= 1
        return spent

    def run_tasks(self, budget):
        s = self.s
        while budget > 0:
            progressed = False
            for t in list(self.tasks):
                if t["gate"] is not None:
                    if not t["gate"].fn(): continue
                    t["gate"] = None
                c0 = s.count; n0 = s.nops
                try: r = next(t["gen"])
                except StopIteration: self.tasks.remove(t); progressed = True; break
                progressed = True
                if isinstance(r, Gate): t["gate"] = r; break
                last = s.hist[-1]
                if last.kind == "mfma": self.slotno += 1; return budget, True
                budget -= (s.count - c0) + (s.nops - n0) + (1 if last.kind == "trans" else 0)
                break
            if not progressed: break
        return budget, False

    def seq(self, L):
        def live(i):
            for t in L[i+1:]:
                m = t.split()[0]
                if m.startswith(("s_cselect", "s_addc")): return True
                if m.startswith("s_") and not m.startswith(("s_mov", "s_mul_i32")): break
            for t in L[i+1:]:
                m = t.split()[0]
                if m.startswith("v_cndmask"): return True
                if m.startswith("v_cmp"): break
            return False
        for i, t in enumerate(L):
            self.s(t)
            if not live(i): yield
    def add_task(self, gen): self.tasks.append({"gen": gen, "gate": None})
    def after_slots(self, n):
        t = self.slotno + n
        return Gate(lambda: self.slotno >= t or self.flush)
    def after_bar(self):
        t = self.nbar + 1
        return Gate(lambda: self.nbar >= t)

    def fill(self, p, used):
        while True:
            b = OPT.budget[p] - used
            self.credit += OPT.dma_rate[p]
            if self.credit >= 1 and b > 0:
                n0 = self.s.nvm
                b -= self.dma_step(max_d=1)
                if self.s.nvm > n0: self.credit -= 1
                else: self.credit = min(self.credit, 2)
            b, mf = self.run_tasks(b)
            if not mf: break
            used = 0

    def stats_compute(self):
        s = self.s; T = TMP
        s.wait(vm=self.ld_st[1])
        s(f"v_mov_b32 v{T}, 0\nv_mov_b32 v{T+1}, 0\nv_mov_b32 v{T+2}, 0x3f803f80")
        for i in range(8): s(f"v_dot2c_f32_bf16 v{T}, v{T+8+i}, v{T+2}\nv_dot2c_f32_bf16 v{T+1}, v{T+8+i}, v{T+8+i}")
        for d in ("row_shr:1", "row_shr:2", "row_shr:4", "row_shr:8", "row_bcast:15 row_mask:0xa"):
            for r in (T, T+1):
                s(f"v_add_f32 v{r}, v{r}, v{r} {d}" + ("" if "mask" in d else " row_mask:0xf") + " bank_mask:0xf" + (" bound_ctrl:1" if "shr" in d else ""))
        s(f"v_mul_f32 v{T}, {hex(f2u(1/512))}, v{T}\nv_mul_f32 v{T+1}, {hex(f2u(1/512))}, v{T+1}")
        s(f"v_fma_f32 v{T+1}, -v{T}, v{T}, v{T+1}\nv_max_f32 v{T+1}, 0, v{T+1}")
        s(f"v_cvt_pk_bf16_f32 v{T+2}, v{T}, v{T+1}")
        s(f"v_and_b32 v{T+1}, 0xffff0000, v{T+2}\nv_add_f32 v{T+1}, {hex(f2u(1e-5))}, v{T+1}")
        s(f"v_cvt_pk_bf16_f32 v{T+1}, v{T+1}, v{T+1}\nv_and_b32 v{T+1}, 0xffff0000, v{T+1}\nv_sqrt_f32 v{T+1}, v{T+1}")
        s(f"v_cvt_pk_bf16_f32 v{T+1}, v{T+1}, v{T+1}")
        s(f"s_mov_b32 s{sT3}, 0xffff\nv_bfi_b32 v{T+2}, s{sT3}, v{T+2}, v{T+1}")
        s("s_waitcnt lgkmcnt(0)")
        s(f"s_mul_i32 s{sEP}, s{sEP}, 0x9E3779B1\ns_add_u32 s{sEP}, s{sEP}, 0x7F4A7C15\ns_and_b32 s{sTAG}, s{sEP}, 0xBFFFBFFF")
        s(f"v_mov_b32 v{T+3}, s{sTAG}\nv_lshlrev_b32 v{T+4}, 3, v{T+4}")
        s("s_mov_b32 exec_lo, 0x80000000\ns_mov_b32 exec_hi, 0x80000000")
        s(f"buffer_store_dwordx2 {v(T+2,2)}, v{T+4}, {srd(SS)}, s{sOF} offen sc1")
        s("s_mov_b64 exec, -1")

    def piece_setup(self):
        s = self.s
        s(f"s_and_b32 s{sT1}, s2, 1\ns_lshl_b32 s{sT1}, s{sT1}, 5\ns_add_u32 s{sT1}, s{sT1}, s{sT0}")
        s(f"s_mul_i32 s{sT2}, s{sT1}, 43691\ns_lshr_b32 s{sT2}, s{sT2}, 17")
        s(f"s_mul_i32 s{sT3}, s{sT2}, 3\ns_sub_u32 s{sT1}, s{sT1}, s{sT3}")
        A, B, Cc = sOW2, sOW2B, sHA
        s(f"s_lshr_b32 s{A}, s{sT2}, 1\ns_add_u32 s{A}, s{A}, 1\ns_cmp_eq_u32 s{A}, 3\ns_cselect_b32 s{A}, 0, s{A}\ns_lshl_b32 s{A}, s{A}, 3")
        s(f"s_and_b32 s{B}, s2, 6\ns_add_u32 s{A}, s{A}, s{B}\ns_and_b32 s{Cc}, s{sT2}, 1\ns_add_u32 s{A}, s{A}, s{Cc}")
        s(f"s_cmp_ge_u32 s{sT2}, 13\ns_cselect_b32 s{Cc}, 13, 6\ns_sub_u32 s{Cc}, s{sT2}, s{Cc}")
        s(f"s_mul_i32 s{sT3}, s{B}, 3\ns_add_u32 s{sT3}, s{sT3}, s{Cc}\ns_lshr_b32 s{B}, s{B}, 1\ns_add_u32 s{B}, s{B}, 24")
        s(f"s_cmp_eq_u32 s{Cc}, 6\ns_cselect_b32 s{B}, s{B}, s{sT3}")
        s(f"s_cmp_ge_u32 s{sT2}, 13\ns_cselect_b32 s{SC}, s14, s12\ns_cselect_b32 s{SC+1}, s15, s13\ns_cselect_b32 s{Cc}, 52, 24\ns_add_u32 s{Cc}, s{Cc}, s{B}")
        s(f"s_cmp_lt_u32 s{sT2}, 6\ns_cselect_b32 s{SC}, s6, s{SC}\ns_cselect_b32 s{SC+1}, s7, s{SC+1}\ns_mov_b32 s{SC+2}, 1835008\ns_cselect_b32 s{SC+2}, 1572864, s{SC+2}")
        s(f"s_cselect_b32 s{Cc}, s{A}, s{Cc}\ns_cselect_b32 s{B}, s{A}, s{B}\ns_movk_i32 s{A}, 3584\ns_cselect_b32 s{A}, 3072, s{A}\ns_mov_b32 s{SC+3}, 0x20000")
        s(f"s_lshl_b32 s{sPP}, s{A}, 3")
        s(f"s_lshl_b32 s{sT3}, s{sT1}, 2\ns_add_u32 s{sT3}, s{sT3}, s{sW}\ns_mul_i32 s{sT3}, s{sT3}, 6\ns_mul_i32 s{sPO}, s{sT3}, s{sPP}")
        s(f"s_lshl_b32 s{B}, s{B}, 7\ns_add_u32 s{sPO}, s{sPO}, s{B}")
        s(f"s_lshl_b32 s{sPS}, s{Cc}, 11\ns_lshl_b32 s{sT1}, s{sT1}, 9\ns_add_u32 s{sPS}, s{sPS}, s{sT1}\ns_add_u32 s{sPS}, s{sPS}, {COLSUM}")
        s(f"s_cmp_lg_u32 s{sW}, 0\ns_cselect_b32 s{sPS}, {OOB}, s{sPS}")
        s(f"s_cmp_ge_u32 s{sT2}, 20\ns_cselect_b32 s{sPS}, {OOB}, s{sPS}\ns_cselect_b32 s{sPO}, {OOB}, s{sPO}")
        T = vDT
        s(f"v_lshrrev_b32 v{vSV}, 3, v{vL}\nv_mul_u32_u24 v{vSV}, s{A}, v{vSV}\nv_and_b32 v{T}, 7, v{vL}\nv_lshl_add_u32 v{vSV}, v{T}, 4, v{vSV}")

    def late_setup(self, typ):
        s = self.s
        def mk(n, p, size):
            for t in (f"s_mov_b32 s{n}, s{p}", f"s_mov_b32 s{n+1}, s{p+1}", f"s_mov_b32 s{n+2}, {size}", f"s_mov_b32 s{n+3}, 0x20000"): yield t
        L = []
        L += list(mk(SO, 18, 0x200000))
        L += [f"s_add_u32 s{SH}, s22, {H_OFF}", f"s_addc_u32 s{SH+1}, s23, 0", f"s_mov_b32 s{SH+2}, {H_BYTES}", f"s_mov_b32 s{SH+3}, 0x20000"]
        L += [f"s_mov_b32 s{sLN2}, {hex(LN2)}"]
        if typ == "Q":
            L += [f"s_mul_i32 s{sCS}, s{sJ}, {3*2048}", f"s_lshl_b32 s{sT1}, s{sCH}, 8", f"s_add_u32 s{sCS}, s{sCS}, s{sT1}", f"s_add_u32 s{sCS}, s{sCS}, {COLSUM+24*2048}",
                  f"s_add_u32 s{sCS+1}, s{sCS}, 128", f"s_add_u32 s{sCS+2}, s{sCS}, 2048", f"s_add_u32 s{sCS+3}, s{sCS}, {2048+128}",
                  f"s_lshl_b32 s{sCS+4}, s{sJ}, 11", f"s_add_u32 s{sCS+4}, s{sCS+4}, s{sT1}", f"s_add_u32 s{sCS+4}, s{sCS+4}, {COLSUM}"]
            pats = ["g", "g", "g", "g", "q"]
        else:
            L += [f"s_lshl_b32 s{sCS}, s{sJ}, 11", f"s_lshl_b32 s{sT1}, s{sCH}, 8", f"s_add_u32 s{sCS}, s{sCS}, s{sT1}", f"s_add_u32 s{sCS+1}, s{sCS}, {COLSUM+16*2048}", f"s_add_u32 s{sCS}, s{sCS}, {COLSUM+8*2048}",
                  f"s_mul_i32 s{sCS+2}, s{sJ}, {3*2048}", f"s_add_u32 s{sCS+2}, s{sCS+2}, s{sT1}", f"s_add_u32 s{sCS+2}, s{sCS+2}, {COLSUM+26*2048}", f"s_add_u32 s{sCS+3}, s{sCS+2}, 128",
                  f"s_lshr_b32 s{sCS+4}, s{sJ}, 1", f"s_lshl_b32 s{sCS+4}, s{sCS+4}, 11", f"s_and_b32 s{sT1}, s{sJ}, 1", f"s_lshl_b32 s{sT1}, s{sT1}, 1", f"s_add_u32 s{sT1}, s{sT1}, s{sCH}", f"s_lshl_b32 s{sT1}, s{sT1}, 7",
                  f"s_add_u32 s{sCS+4}, s{sCS+4}, s{sT1}", f"s_add_u32 s{sCS+4}, s{sCS+4}, {COLSUM+48*2048}"]
            pats = ["q", "q", "g", "g", "g"]
        L += [f"s_lshl_b32 s{sT1}, s{sRB}, 1", f"s_add_u32 s{sT1}, s{sT1}, s{sTG}", f"s_mul_i32 s{sOH}, s{sT1}, {TBB}",
              f"s_lshl_b32 s{sOF}, s{sT1}, 5", f"s_lshl_b32 s{sT2}, s{sJ}, 1", f"s_add_u32 s{sT2}, s{sT2}, s{sCH}", f"s_add_u32 s{sOF}, s{sOF}, s{sT2}",
              f"s_add_u32 s{sOF}, s{sOF}, {16 if typ=='Q' else 0}", f"s_lshl_b32 s{sOF}, s{sOF}, 3"]
        L += [f"s_lshl_b32 s{sT2}, s{sT2}, 1", f"s_add_u32 s{sT3}, s{sT2}, s{sTG}"]
        if typ == "Q":
            L += [f"s_lshl_b32 s{sKV}, s{sT3}, 14", f"s_add_u32 s{sKV}, s{sKV}, {KV}", f"s_lshl_b32 s{sKF}, s{sT3}, 7", f"s_add_u32 s{sKF}, s{sKF}, {KVFLAG}",
                  f"s_or_b32 s{sT3}, s{sRB}, s{sJ}", f"s_or_b32 s{sT3}, s{sT3}, s{sW}", f"s_cmp_eq_u32 s{sT3}, 0", f"s_cselect_b32 s{sEO}, {EPOCH}, {OOB}"]
        else:
            L += [f"s_lshl_b32 s{sKV}, s{sT3}, 4", f"s_add_u32 s{sKV}, s{sKV}, s{sRB}", f"s_lshl_b32 s{sKF}, s{sKV}, 3", f"s_add_u32 s{sKF}, s{sKF}, {KVFLAG}",
                  f"s_lshl_b32 s{sKV}, s{sKV}, 10", f"s_add_u32 s{sKV}, s{sKV}, {KV}",
                  f"s_cmp_eq_u32 s{sTG}, 0", f"s_cselect_b32 s{sEO}, {OOB}, s{sKV}", f"s_cselect_b32 s{sKV}, s{sKV}, {OOB}"]
        L += [f"s_and_b32 s{sTB}, s2, 7", f"s_lshl_b32 s{sTB}, s{sTB}, 2", f"s_bfe_u32 s{sT2}, s2, 0x20003", f"s_or_b32 s{sTB}, s{sTB}, s{sT2}", f"s_lshr_b32 s{sCT}, s2, 5",
              f"s_cmp_eq_u32 s{sW}, 0", f"s_cselect_b32 s{SW}, s8, s16", f"s_cselect_b32 s{SW+1}, s9, s17", f"s_mov_b32 s{SW+2}, 1835008", f"s_cselect_b32 s{SW+2}, 524288, s{SW+2}", f"s_mov_b32 s{SW+3}, 0x20000",
              f"s_cselect_b32 s{sT2}, 1, s{sW}", f"s_sub_u32 s{sT2}, s{sT2}, 1",
              f"s_lshl_b32 s{sOW2}, s{sT2}, 19", f"s_lshl_b32 s{sT3}, s{sCT}, 7", f"s_add_u32 s{sOW2}, s{sOW2}, s{sT3}",
              f"s_mul_i32 s{sHB}, s{sT2}, 5", f"s_min_u32 s{sHB6}, s{sT2}, 1", f"s_add_u32 s{sHB}, s{sHB}, s{sHB6}", f"s_add_u32 s{sHB}, s{sHB}, 96",
              f"s_lshl_b32 s{sOW2B}, s{sHB}, 14", f"s_add_u32 s{sOW2B}, s{sOW2B}, s{sT3}",
              f"s_mul_i32 s{sT3}, s{sTB}, {TBB}", f"s_lshl_b32 s{sHB}, s{sHB}, 11", f"s_add_u32 s{sHB}, s{sHB}, s{sT3}",
              f"s_lshl_b32 s{sHA}, s{sT2}, 16", f"s_add_u32 s{sHA}, s{sHA}, s{sT3}",
              f"s_add_u32 s{sHB6}, s{sHB}, {5*2048}", f"s_cmp_eq_u32 s{sW}, 1", f"s_cselect_b32 s{sHB6}, s{sHB6}, {OOB}",
              f"s_lshl_b32 s{sFA}, s{sTB}, 8", f"s_add_u32 s{sFB}, s{sFA}, {FLAGB}", f"s_add_u32 s{sFA}, s{sFA}, {FLAGA}",
              f"s_add_u32 s{sT3}, s{sHA}, {112*2048}", f"s_add_u32 s{sT2}, s{sFB}, 128",
              f"s_cmp_eq_u32 s{sW}, 0", f"s_cselect_b32 s{sHA}, s{sT3}, s{sHA}", f"s_cselect_b32 s{sHB}, {OOB}, s{sHB}", f"s_cselect_b32 s{sOW2B}, {OOB}, s{sOW2B}",
              f"s_cselect_b32 s{sFA}, s{sT2}, s{sFA}", f"s_cselect_b32 s{sFB}, s{sT2}, s{sFB}"]
        T = vLT
        L += [f"v_lshrrev_b32 v{vE3}, 5, v{vL}",
              f"v_and_b32 v{vQ1}, 31, v{vL}", f"v_lshlrev_b32 v{vQ1}, 3, v{vQ1}", f"v_lshl_add_u32 v{vQ0}, v{vE3}, 10, v{vQ1}",
              f"v_and_b32 v{vG1}, 0x78, v{vQ1}", f"v_bfe_u32 v{T}, v{vL}, 4, 1", f"v_mul_u32_u24 v{T}, {28*2048}, v{T}", f"v_add_u32 v{vG1}, v{vG1}, v{T}", f"v_lshl_add_u32 v{vG0}, v{vE3}, 10, v{vG1}",
              f"v_lshl_add_u32 v{vG1}, v{vE3}, 30, v{vG1}"]
        L += [f"s_lshl_b32 s{sT1}, s{sT1}, 9", f"s_add_u32 s{sT1}, s{sT1}, {STATS}", f"v_add_u32 v{vSV}, s{sT1}, v{vQ1}",
             f"v_lshl_add_u32 v{vQ1}, v{vE3}, 30, v{vQ1}",
             f"v_cmp_eq_u32 vcc, 0, v{vE3}", f"v_mov_b32 v{T}, s{sTAG}", f"v_cndmask_b32 v{vE3}, 0, v{T}, vcc"]
        yield from self.seq(L)
        gl = [f"buffer_load_dwordx2 {v(ST,2)}, v{vSV}, {srd(SS)}, 0 offen sc1", f"buffer_load_dwordx2 {v(ST+2,2)}, v{vSV}, {srd(SS)}, 0 offen offset:256 sc1"]
        for u, p in enumerate(pats):
            r0, r1 = (vG0, vG1) if p == "g" else (vQ0, vQ1)
            gl += [f"buffer_load_dwordx2 {v(CS+4*u,2)}, v{r0}, {srd(SS)}, s{sCS+u} offen sc1", f"buffer_load_dwordx2 {v(CS+4*u+2,2)}, v{r1}, {srd(SS)}, s{sCS+u} offen offset:512 sc1"]
        self.gran_loads = gl
        self.gran_ready = True
        if typ == "H":
            for i in range(4): s(f"v_mov_b32 v{KF+i}, 0x3f803f80"); yield
        else:
            L = [f"v_and_b32 v{T}, 1, v{vL}", f"v_lshlrev_b32 v{T}, 4, v{T}", f"v_lshlrev_b32 v{T}, v{T}, v{KF}",
                 f"v_lshrrev_b32 v{KF}, 3, v{vL}", f"v_xor_b32 v{KF}, v{KF}, v{vL}", f"v_and_b32 v{KF}, 4, v{KF}", f"v_and_b32 v{KF+1}, 16, v{vL}", f"v_or_b32 v{KF}, v{KF}, v{KF+1}",
                 f"v_bfe_u32 v{KF+1}, v{vL}, 1, 1", f"v_or_b32 v{KF}, v{KF}, v{KF+1}", f"v_bfe_u32 v{KF+1}, v{vL}, 3, 1", f"v_lshl_or_b32 v{KF+3}, v{KF+1}, 1, v{KF}"]
            s(f"v_mov_b32 v{KF}, 0x3f80"); yield
            for i in range(4): L += [f"v_cmp_eq_u32 vcc, {i}, v{KF+3}", f"v_cndmask_b32 v{KF+i}, 0, v{T}, vcc"]
            yield from self.seq(L)

    def colsum_pre(self):
        s = self.s; T = CS; A = TMP+24; U = TMP+16
        s(f"v_mov_b32 v{U}, 0x3f80\nv_mov_b32 v{U+1}, 0x3f800000")
        for e in range(8): s(f"v_mov_b32 v{A+e}, 0")
        s(f"v_and_b32 v{U+2}, 7, v{vL}\nv_lshlrev_b32 v{U+2}, 3, v{U+2}\nv_lshrrev_b32 v{U+3}, 3, v{vL}\nv_or_b32 v{U+2}, v{U+2}, v{U+3}\nv_lshlrev_b32 v{U+2}, 4, v{U+2}")
        s(f"s_lshl_b32 s{sPP}, s{sW}, 2\ns_add_u32 s{sPP}, s{sPP}, {XTRA+2048}\nv_add_u32 v{U+2}, s{sPP}, v{U+2}")
        for n in range(6):
            if n % 2 == 0: s.wait(vm=self.ld_cs[n+1])
            for r in range(4): s(f"v_dot2c_f32_bf16 v{A+2*r}, v{T+4*n+r}, v{U}\nv_dot2c_f32_bf16 v{A+2*r+1}, v{T+4*n+r}, v{U+1}")
        for e in range(4): s(f"v_permlane32_swap_b32 v{A+e}, v{A+e+4}")
        for e in range(4): s(f"v_add_f32 v{A+e}, v{A+e}, v{A+e+4}")
        for e in range(2): s(f"v_permlane16_swap_b32 v{A+e}, v{A+e+2}")
        for e in range(2): s(f"v_add_f32 v{A+e}, v{A+e}, v{A+e+2}")
        s(f"v_add_u32 v{TMP+1}, {XTRA+2048}, v{vL16}\nv_lshrrev_b32 v{TMP+8}, 1, v{vL16}")
        s(f"v_add_f32 v{A+2}, v{A}, v{A} row_ror:8 row_mask:0xf bank_mask:0x3")
        s(f"v_add_f32 v{A+2}, v{A+1}, v{A+1} row_ror:8 row_mask:0xf bank_mask:0xc")
        self.pend_w = s(f"ds_write_b32 v{U+2}, v{A+2}")

    def colsum_task(self, rd):
        s = self.s; T = TMP
        s.wait(lg=rd); yield
        for x in (f"v_add_f32 v{T+4}, v{T+4}, v{T+5}", f"v_add_f32 v{T+6}, v{T+6}, v{T+7}", f"v_mov_b32 v{T+7}, s{sTAG}", f"v_add_f32 v{T+4}, v{T+4}, v{T+6}",
                  f"v_cvt_pk_bf16_f32 v{T+5}, v{T+4}, v{T+4}", f"v_lshlrev_b32 v{T+5}, 16, v{T+5}", f"v_sub_f32 v{T+5}, v{T+4}, v{T+5}",
                  f"v_cvt_pk_bf16_f32 v{T+6}, v{T+4}, v{T+5}", f"buffer_store_dwordx2 {v(T+6,2)}, v{T+8}, {srd(SS)}, s{sPS} offen sc1"): s(x); yield

    def prep_task(self, typ):
        s = self.s
        s.wait(vm=self.ld_gran); yield
        pairs = [(ST+1, f"s{sTAG}"), (ST+3, f"s{sTAG}")]
        for u in range(5): pairs += [(CS+4*u+1, f"s{sTAG}"), (CS+4*u+3, f"v{vE3}")]
        yield from self.check(pairs, self.gran_loads, typ + "g")
        for t in range(2):
            g = ST+2*t
            for x in (f"v_and_b32 v{vD+t}, 0xffff0000, v{g}", f"v_xor_b32 v{g}, 0x8000, v{g}", f"v_rcp_f32 v{vC+t}, v{vD+t}",
                      f"v_perm_b32 v{MF+4*t}, v{g}, v{g}, s{sT2}" , f"v_mov_b32 v{MF+4*t+1}, 0", f"v_mov_b32 v{MF+4*t+2}, v{MF+4*t}", f"v_mov_b32 v{MF+4*t+3}, 0",
                      f"v_mul_f32 v{vC+t}, {hex(LOG2E)}, v{vC+t}"):
                if "perm" in x and t == 0: s(f"s_mov_b32 s{sT2}, 0x01000100"); yield
                s(x); yield
        for u in range(2):
            for t in range(2):
                ac = v(ACCA+32*u+16*t, 16)
                A_, B_ = v(CS+4*u, 4), v(MF+4*t, 4)
                if typ == "H": A_, B_ = B_, A_
                s(f"{MF32} {ac}, {A_}, {B_}, {ac}"); yield
        self.prep_done = True; self.prep_slot = self.slotno
        for u in range(2):
            for t in range(2):
                yield self.after_slots(4)
                ac = v(ACCB+32*u+16*t, 16)
                s(f"{MF32} {ac}, {v(CS+8+4*u,4)}, {v(MF+4*t,4)}, {ac}"); yield

    def corr3_task(self):
        s = self.s
        for t in range(2):
            yield self.after_slots(3)
            ac = v(ACCA+16*t, 16)
            s(f"{MF32} {ac}, {v(CS+16,4)}, {v(MF+4*t,4)}, {ac}"); yield

    def glu_ep(self, R, t, soff, imm):
        s = self.s
        G, U = R, R+8
        for i in range(8): s(f"v_mul_f32 v{G+i}, v{vC+t}, v{G+i}"); yield
        for i in range(8): s(f"v_exp_f32 v{G+i}, -v{G+i}"); yield
        for i in range(8): s(f"v_fma_f32 v{G+i}, v{G+i}, v{vD+t}, v{vD+t}"); yield
        for i in range(8): s(f"v_rcp_f32 v{G+i}, v{G+i}"); yield
        for i in range(8): s(f"v_mul_f32 v{U+i}, v{U+i}, v{G+i}"); yield
        for i in range(4): s(f"v_cvt_pk_bf16_f32 v{G+i}, v{U+2*i}, v{U+2*i+1}"); yield
        self.last_store = s(f"buffer_store_dwordx4 {v(G,4)}, v{vL16}, {srd(SH)}, s{soff} offen offset:{imm} sc1"); yield

    def glu_pass(self, base, ku_mul, ku_add):
        s = self.s
        for x in (f"s_mul_i32 s{sT1}, s{sJ}, {ku_mul}", f"s_lshl_b32 s{sT2}, s{sCH}, 1", f"s_add_u32 s{sT1}, s{sT1}, s{sT2}", f"s_add_u32 s{sT1}, s{sT1}, {ku_add}",
                  f"s_lshl_b32 s{sT1}, s{sT1}, 11", f"s_add_u32 s{sT1}, s{sT1}, s{sOH}"): s(x); yield
        for u in range(2):
            for t in range(2):
                yield from self.glu_ep(base+32*u+16*t, t, sT1, u*2048+t*1024)

    def flag(self, base, delay):
        s = self.s
        st = self.last_store
        yield self.after_slots(delay)
        r = ST
        s(f"v_mov_b32 v{r}, s{sTAG}"); yield
        s(f"v_mov_b32 v{r+1}, s{sEP}"); yield
        s(f"s_add_u32 s{sT3}, s{sOF}, {base}")
        s.wait(vm=st)
        s("s_mov_b64 exec, 1")
        s(f"buffer_store_dwordx2 {v(r,2)}, off, {srd(SS)}, s{sT3} sc1")
        s("s_mov_b64 exec, -1"); yield

    def phi(self, R, n, creg, tmp):
        s = self.s
        eps = hex(f2u(1e-6*1.4426950408889634))
        for b in range(0, n, 4):
            for i in range(4): s(f"v_mul_f32 v{R+b+i}, v{creg(b+i)}, v{R+b+i}"); yield
            for i in range(4): s(f"v_exp_f32 v{tmp+i}, v{R+b+i} clamp"); yield
            for i in range(4): s(f"v_max_f32 v{R+b+i}, {eps}, v{R+b+i}"); yield
            for i in range(4): s(f"v_fmac_f32 v{tmp+i}, s{sLN2}, v{R+b+i}"); yield
            for i in range(2): s(f"v_cvt_pk_bf16_f32 v{R+b//2+i}, v{tmp+2*i}, v{tmp+2*i+1}"); yield

    def kv_task(self):
        s = self.s; T = TMP
        yield Gate(lambda: self.prep_done)
        ad, ad2 = vG0, vG1
        for x in (f"s_add_u32 s{sT1}, s{sMW}, {XTRA}", f"v_and_b32 v{ad}, 31, v{vL}", f"v_lshlrev_b32 v{ad}, 2, v{ad}", f"v_add_u32 v{ad}, s{sT1}, v{ad}",
                  f"v_lshrrev_b32 v{ad2}, 5, v{vL}", f"v_lshlrev_b32 v{ad2}, 4, v{ad2}", f"v_add_u32 v{ad2}, s{sT1}, v{ad2}"): s(x); yield
        s(f"ds_write_b32 v{ad}, v{vC}"); yield
        s(f"ds_write_b32 v{ad}, v{vC+1} offset:128"); yield
        for t in range(2):
            for i in range(4): rd = s(f"ds_read_b128 {v(T+16*t+4*i,4)}, v{ad2} offset:{128*t+32*i}"); yield
        yield Gate(lambda: self.slotno >= self.prep_slot + 4)
        s.wait(lg=rd); yield
        tmp = CS
        for t in range(2):
            yield from self.phi(ACCA+16*t, 16, lambda i: T+16*t+i, tmp)
            Vr = ACCA+32+16*t
            for i in range(16): s(f"v_mul_f32 v{Vr+i}, v{T+16*t+i}, v{Vr+i}"); yield
            for i in range(8): s(f"v_cvt_pk_bf16_f32 v{Vr+i}, v{Vr+2*i}, v{Vr+2*i+1}"); yield
        D1, D2 = T, T+16
        first = True
        for t in range(2):
            for kk in range(2):
                pk = v(ACCA+16*t+4*kk, 4); vv = v(ACCA+32+16*t+4*kk, 4)
                s(f"{MF32} {v(D1,16)}, {pk}, {vv}, {'0' if first else v(D1,16)}"); yield
                s(f"{MF32} {v(D2,16)}, {pk}, {v(KF,4)}, {'0' if first else v(D2,16)}"); yield
                first = False
        for x in (f"v_add_u32 v{ad}, s{sT1}, v{vL16}", f"v_xor_b32 v{ad2}, 0x2000, v{vL16}", f"s_add_u32 s{sT2}, s{sMW}, 0", f"v_xor_b32 v{ad2}, s{sT2}, v{ad2}", f"v_add_u32 v{ad2}, {XTRA}, v{ad2}",
                  f"s_mov_b32 s{sMK}, 0xffff0000", f"s_mov_b32 s{sMK+1}, 0xffff0000"): s(x); yield
        self.kv_safe = True
        yield self.after_slots(3)
        for i in range(8): s(f"v_cndmask_b32 v{D1+i}, v{D1+i}, v{D2+i}, s[{sMK}:{sMK+1}]"); yield
        for i in range(8, 16): s(f"v_cndmask_b32 v{D1+i}, v{D2+i}, v{D1+i}, s[{sMK}:{sMK+1}]"); yield
        for i in range(4): self.pend_w = s(f"ds_write_b128 v{ad}, {v(D1+4*i,4)} offset:{1024*i}"); yield
        yield self.after_bar()
        for i in range(4): rd = s(f"ds_read_b128 {v(D2+4*i,4)}, v{ad2} offset:{1024*i}"); yield
        yield self.after_slots(3)
        s.wait(lg=rd); yield
        for i in range(16): s(f"v_add_f32 v{D1+i}, v{D1+i}, v{D2+i}"); yield
        for i in range(8): s(f"v_cvt_pk_bf16_f32 v{D2+i}, v{D1+2*i}, v{D1+2*i+1}"); yield
        s(f"buffer_store_dwordx4 {v(D2,4)}, v{vL16}, {srd(SS)}, s{sKV} offen sc1"); yield
        st = s(f"buffer_store_dwordx4 {v(D2+4,4)}, v{vL16}, {srd(SS)}, s{sEO} offen sc1"); yield
        yield self.after_slots(OPT.flag_delay)
        s(f"v_mov_b32 v{D1}, s{sTAG}"); yield
        s(f"v_mov_b32 v{D1+1}, s{sEP}"); yield
        s.wait(vm=st)
        s("s_mov_b64 exec, 1")
        s(f"buffer_store_dwordx2 {v(D1,2)}, off, {srd(SS)}, s{sKF} sc1")
        s("s_mov_b64 exec, -1"); yield

    def kvreg(self, r): return (ACCA+32+4*r) if r < 8 else (TMP+4*(r-8))
    def kvload_task(self):
        s = self.s
        ad = vG0
        s(f"v_and_b32 v{ad}, 15, v{vL}"); yield
        s(f"v_lshlrev_b32 v{ad}, 3, v{ad}"); yield
        yield self.after_slots(OPT.kv_poll_at)
        txt = f"buffer_load_dwordx2 {v(ST+2,2)}, v{ad}, {srd(SS)}, s{sKF} offen sc1"
        ld = s(txt); yield
        yield self.after_slots(OPT.kv_poll_wait)
        s.wait(vm=ld); yield
        yield from self.check([(ST+2, f"s{sTAG}"), (ST+3, f"s{sEP}")], [txt], "kvf")
        for r in range(16):
            if r and r % 4 == 0: s(f"s_add_u32 s{sKV}, s{sKV}, 4096"); yield
            self.kvld.append(s(f"buffer_load_dwordx4 {v(self.kvreg(r),4)}, v{vL16}, {srd(SS)}, s{sKV} offen offset:{(r%4)*1024} sc1")); yield
            yield self.after_slots(1)

    def reads_for(self, G, typ):
        st, q = G//4, G % 4
        b = WB + 8*(G % 4)
        o = []
        if st < 16:
            w0 = [f"ds_read_b64_tr_b16 {v(b,2)}, v{WA} offset:{q*4096}", f"ds_read_b64_tr_b16 {v(b+2,2)}, v{WA} offset:{q*4096+512}"]
            w1 = [f"ds_read_b64_tr_b16 {v(b+4,2)}, v{WA+1} offset:{q*4096}", f"ds_read_b64_tr_b16 {v(b+6,2)}, v{WA+1} offset:{q*4096+512}"]
            if st < 8:
                o = [f"ds_read_b128 {a((2*G)*4,4)}, v{XA+q}"] + w0 + [f"ds_read_b128 {a((2*G+1)*4,4)}, v{XA+q} offset:4096"] + w1
            else: o = w0 + w1
        else:
            d, e = (1024, 256) if typ == "H" else (2048, 512)
            for sb in range(2):
                o += [f"ds_read_b64_tr_b16 {v(b+4*sb,2)}, v{WA} offset:{q*4096+sb*d}", f"ds_read_b64_tr_b16 {v(b+4*sb+2,2)}, v{WA} offset:{q*4096+sb*d+e}"]
        return o
    def mfmas_for(self, G, typ):
        b = WB + 8*(G % 4); o = []
        if G < 64:
            base = ACCA if G < 32 else ACCB; ks = G % 32
            for u in range(2):
                for t in range(2):
                    ac = v(base+32*u+16*t, 16); W_, X_ = v(b+4*u, 4), a((2*ks+t)*4, 4)
                    if typ == "H" and G < 32: W_, X_ = X_, W_
                    o.append(f"{MF32} {ac}, {W_}, {X_}, {'0' if ks == 0 else ac}")
        else:
            for sb in range(2):
                ks = 2*(G-64)+sb
                for t in range(2):
                    ac = v(ACCA+16*t, 16)
                    o.append(f"{MF32} {ac}, {v(b+4*sb,4)}, {a((2*ks+t)*4,4)}, {'0' if ks == 0 else ac}")
        return o
    def items_of(self, st):
        if st < 8: return [("x", st), ("w1", st)]
        if st < 16: return [("w2p", st)]
        if st < 20: return [("w3", st)]
        return []
    def barrier(self, n, typ):
        s = self.s
        its = self.items_of(n)
        for it in its: self.dma_step(force_item=it)
        vm = max((self.last_of[it] for it in its), key=lambda i: i.vmseq) if its else None
        lg = self.pend_w; self.pend_w = None
        if vm is not None or lg is not None: s.wait(vm=vm, lg=lg)
        s("s_barrier"); self.nbar += 1
        for it in self.items_of(n-2) if n >= 2 else []: self.free.append(self.slot_of[it])
        cost = 2
        if its:
            if n in (8, 16) and not (n == 8 and typ == "Q"):
                for x in self.rdpattern({8: "glu", 16: "half" if typ == "H" else "q"}[n]): s(x); cost += 1
                self.wbase = 0
            wslot = self.slot_of[its[-1]]
            d = (wslot*SLOT - self.wbase) & 0xffffffff; self.wbase = wslot*SLOT
            if d:
                for r in range(2 if n < 16 else 1): s(f"v_add_u32 v{WA+r}, {hex(d)}, v{WA+r}"); cost += 1
            if n < 8:
                xs = self.slot_of[its[0]]
                d = (xs*SLOT - self.xbase) & 0xffffffff; self.xbase = xs*SLOT
                if d:
                    for r in range(4): s(f"v_add_u32 v{XA+r}, {hex(d)}, v{XA+r}"); cost += 1
        return cost

    def phase1(self, typ):
        s = self.s
        self.tasks = []; self.free = list(range(1, NSLOT)); self.slot_of = {("x", 0): 0}; self.last_of = {("x", 0): self.x0last}
        self.dma = self.dma_task(typ); self.dma_gate = None; self.credit = 0
        self.slotno = 0; self.nbar = 0; self.flush = False; self.pend_w = None
        self.gran_ready = False; self.cs_done = False; self.prep_done = False; self.kvld = []; self.kv_safe = False
        for x in self.wpattern("kv" if typ == "H" else "glu"): s(x)
        if typ == "H":
            s(f"s_lshl_b32 s{sOW}, s{sJ}, 7\ns_mul_i32 s{sT3}, s{sW}, {16*3072}\ns_add_u32 s{sOW}, s{sOW}, s{sT3}\ns_add_u32 s{sOW}, s{sOW}, 1024")
        else:
            s(f"s_mul_i32 s{sOW}, s{sJ}, 384\ns_mul_i32 s{sT3}, s{sW}, {16*3584}\ns_add_u32 s{sOW}, s{sOW}, s{sT3}")
        self.dma_step(force_item=("w1", 0))
        self.stamp(0)
        self.piece_setup()
        self.ld_cs = []
        for n in range(6):
            self.ld_cs.append(s(f"buffer_load_dwordx4 {v(CS+4*n,4)}, v{vSV}, {srd(SC)}, s{sPO} offen"))
            if n < 5: s(f"s_add_u32 s{sPO}, s{sPO}, s{sPP}")
        T = vBT
        s(f"v_and_b32 v{XA}, 31, v{vL}\ns_lshl_b32 s{sT3}, s{sTG}, 6\nv_add_u32 v{XA}, s{sT3}, v{XA}\nv_lshlrev_b32 v{XA}, 7, v{XA}")
        s(f"v_lshrrev_b32 v{T}, 5, v{vL}\nv_bfe_u32 v{XA+1}, v{vL}, 1, 3\nv_xor_b32 v{T}, v{T}, v{XA+1}\nv_lshl_add_u32 v{XA}, v{T}, 4, v{XA}")
        for q in (1, 2, 3): s(f"v_xor_b32 v{XA+q}, {32*q}, v{XA}")
        for x in self.rdpattern("kv" if typ == "H" else "glu"): s(x)
        self.xbase = 0; self.wbase = 0
        self.stats_compute()
        self.dma_step(force_item=("x", 1))
        self.dma_step(force_item=("w1", 1))
        self.stamp(1)
        self.colsum_pre()
        self.barrier(0, typ)
        self.stamp(2)
        csrd = s(f"ds_read_b128 {v(TMP+4,4)}, v{TMP+1}")
        rdl = {}
        for G in (0, 1):
            for x in self.reads_for(G, typ): rdl[G] = s(x)
        self.add_task(self.colsum_task(csrd))
        self.add_task(self.late_setup(typ))
        for G in range(80):
            p = 1 if G < 32 else (2 if G < 64 else 3)
            if G == 32:
                assert not self.tasks, "P1 tasks unfinished"
                self.stamp(3)
                self.add_task(self.prep_task(typ))
                if typ == "Q":
                    def epA():
                        yield Gate(lambda: self.prep_done and self.slotno >= self.prep_slot + 3)
                        yield from self.glu_pass(ACCA, 12, 0)
                    self.add_task(epA())
                else: self.add_task(self.kv_task())
            if G == 64:
                assert (not self.tasks) or (typ == "H" and self.kv_safe and len(self.tasks) == 1), "P2 tasks unfinished"
                self.stamp(4)
                self.add_task(self.corr3_task())
                if typ == "Q": self.add_task(self.kvload_task())
                def epB():
                    yield self.after_slots(3)
                    yield from self.glu_pass(ACCB, 12, 8 if typ == "H" else 4)
                    yield from self.flag(FLAGA, OPT.flag_delay)
                self.add_task(epB())
            s.wait(lg=rdl[G])
            nxt = self.reads_for(G+2, typ) if G+2 < 80 else []
            mf = self.mfmas_for(G, typ)
            for i, m in enumerate(mf):
                s(m); self.slotno += 1
                used = 1 if i == 0 else 0
                if G % 4 == 2 and i == 0: used += self.barrier(G//4+1, typ)
                if G == 79 and i == 0: used += self.barrier(21, typ)
                lo, hi = (i*len(nxt)+3)//4, ((i+1)*len(nxt)+3)//4
                for x in nxt[lo:hi]: rdl[G+2] = s(x); used += 1
                self.fill(p, used)
        self.stamp(5)

    def move_task(self):
        s = self.s
        for x in self.rdpattern("w2"): s(x); yield
        base = 0; prev = None
        for c in range(19):
            yield Gate(lambda: ("v2", c) in self.last_of)
            slot = self.slot_of[("v2", c)]
            d = (slot*SLOT - base) & 0xffffffff; base = slot*SLOT
            if d:
                for r in range(2): s(f"v_add_u32 v{WA+r}, {hex(d)}, v{WA+r}"); yield
            s.wait(vm=self.last_of[("v2", c)]); yield
            for sb in range(2):
                n = 2*c+sb
                for c2 in range(2):
                    for hf in range(2):
                        dst = a(8*n+4*c2+2*hf, 2) if n < 32 else v(W2B+8*(n-32)+4*c2+2*hf, 2)
                        if n >= 32 and not self.tail_done: yield Gate(lambda: self.tail_done)
                        rd = s(f"ds_read_b64_tr_b16 {dst}, v{WA+c2} offset:{sb*2048+hf*1024}"); yield
            if prev is not None:
                s.wait(lg=prev[1]); self.free.append(prev[0]); yield
            prev = (slot, rd)
        self.last_move = rd
        self.moves_done = True

    def tailH(self):
        s = self.s
        for x in (f"s_lshl_b32 s{sT1}, s{sJ}, 1", f"s_add_u32 s{sT1}, s{sT1}, s{sCH}", f"s_add_u32 s{sT1}, s{sT1}, 96", f"s_lshl_b32 s{sT1}, s{sT1}, 11", f"s_add_u32 s{sT1}, s{sT1}, s{sOH}"): s(x); yield
        for t in range(2): yield from self.glu_ep(ACCA+16*t, t, sT1, t*1024)
        self.tail_done = True
        yield from self.flag(FLAGB, OPT.tail_flag_delay)

    def tailQ(self):
        s = self.s
        SUM = WB; tmp = WB+16; KA, KB = WB+20, WB+24
        ph = [self.phi(ACCA+16*t, 16, lambda i, t=t: vC+t, tmp) for t in range(2)]
        def allphi():
            for g in ph: yield from g
        ag = allphi()
        yield Gate(lambda: len(self.kvld) == 16)
        for r in range(16):
            for _ in range(9):
                try: next(ag); yield
                except StopIteration: pass
            s.wait(vm=self.kvld[r])
            s(f"{MF32} {v(SUM,16)}, {v(KF,4)}, {v(self.kvreg(r),4)}, {'0' if r == 0 else v(SUM,16)}"); yield
        for _ in ag: yield
        ad, ad2 = vG0, vG1
        for x in (f"s_add_u32 s{sT1}, s{sMW}, {XTRA}", f"v_add_u32 v{ad}, s{sT1}, v{vL16}", f"s_lshl_b32 s{sT1}, s{sCH}, 12", f"s_add_u32 s{sT1}, s{sT1}, {XTRA}", f"v_add_u32 v{ad2}, s{sT1}, v{vL16}",
                  f"s_lshl_b32 s{sT1}, s{sJ}, 1", f"s_add_u32 s{sT1}, s{sT1}, s{sCH}", f"s_lshl_b32 s{sT1}, s{sT1}, 12", f"s_add_u32 s{sT1}, s{sT1}, {112*2048}", f"s_add_u32 s{sT1}, s{sT1}, s{sOH}",
                  f"v_mov_b32 v{tmp}, s{sEP}"): s(x); yield
        for i in range(4): s(f"v_cvt_pk_bf16_f32 v{SUM+i}, v{SUM+2*i}, v{SUM+2*i+1}"); yield
        w = s(f"ds_write_b128 v{ad}, {v(SUM,4)}")
        s.wait(lg=w)
        s("s_barrier")
        s(f"ds_read_b128 {v(KA,4)}, v{ad2}")
        rd = s(f"ds_read_b128 {v(KB,4)}, v{ad2} offset:8192")
        s("s_mov_b64 exec, 1")
        s(f"buffer_store_dword v{tmp}, off, {srd(SS)}, s{sEO} sc1")
        s("s_mov_b64 exec, -1"); yield
        s.wait(lg=rd)
        for t in range(2):
            for hd in range(2):
                s(f"{MF32} {v(ACCB+32*t+16*hd,16)}, {v(KA+4*hd,4)}, {v(ACCA+16*t+4*hd,4)}, 0"); yield
        for t in range(2):
            for hd in range(2):
                D = ACCB+32*t+16*hd; num, den = (D, D+8) if hd == 0 else (D+8, D)
                s(f"v_add_f32 v{den}, {hex(f2u(1e-6))}, v{den}"); yield
                s(f"v_rcp_f32 v{den}, v{den}"); yield
                s(f"v_mul_f32 v{den}, s{sLN2}, v{den}"); yield
                for i in range(8): s(f"v_mul_f32 v{num+i}, v{den}, v{num+i}"); yield
                for i in range(4): s(f"v_cvt_pk_bf16_f32 v{den+4+i}, v{num+2*i}, v{num+2*i+1}"); yield
                self.last_store = s(f"buffer_store_dwordx4 {v(den+4,4)}, v{vL16}, {srd(SH)}, s{sT1} offen offset:{hd*2048+t*1024} sc1"); yield
        self.tail_done = True
        yield from self.flag(FLAGB, OPT.tail_flag_delay)

    def pollA_task(self):
        s = self.s
        yield Gate(lambda: self.tail_done and ("v2", OPT.pollA_chunk) in self.last_of)
        for x in (f"s_cmp_eq_u32 s{sW}, 0", f"s_cselect_b32 s{sT2}, 15, 31", f"v_and_b32 v{vQ0}, s{sT2}, v{vL}", f"v_lshlrev_b32 v{vQ0}, 3, v{vQ0}",
                  f"v_and_b32 v{vQ1}, 15, v{vL}", f"v_lshlrev_b32 v{vQ1}, 3, v{vQ1}"): s(x)
        yield
        self.pollA_txt = f"buffer_load_dwordx2 {v(MF,2)}, v{vQ0}, {srd(SS)}, s{sFA} offen sc1"
        self.pollA = s(self.pollA_txt); yield

    def tail(self, typ):
        s = self.s
        self.flush = False; self.tail_done = False; self.moves_done = False
        left = self.tasks; self.tasks = []
        main = {"gen": self.tailH() if typ == "H" else self.tailQ(), "gate": None}
        mv = {"gen": self.move_task(), "gate": None}
        pl = {"gen": self.pollA_task(), "gate": None}
        pri = left + [main]
        def step(tl, n):
            self.tasks = [t for t in tl]
            c0 = s.count
            while s.count - c0 < n and self.tasks:
                c1 = s.count
                self.run_tasks(1)
                if s.count == c1 and all(t["gate"] is not None and not t["gate"].fn() for t in self.tasks): break
            return self.tasks
        low = [mv, pl]
        guard = 0
        while pri or low or self.dma is not None:
            c0 = s.count
            pri = step(pri, OPT.tail_pri)
            low = step(low, OPT.tail_low if pri else 6)
            self.dma_step(max_d=1)
            self.slotno += 1
            guard = guard + 1 if s.count == c0 else 0
            assert guard < 200, "tail deadlock"
        s.wait(lg=0)
        self.stamp(6)
        s.wait(vm=self.pollA)

    def phase2(self):
        s = self.s
        NB = 8
        ACC = ACCA
        def hb(n): return HB + 8*(n % NB)
        for _ in self.check([(MF, f"s{sTAG}"), (MF+1, f"s{sEP}")], [self.pollA_txt], "pa"): pass
        self.stamp(7)
        loads = {}
        def issue(n):
            if n >= 38: return
            if n == 32: s(f"s_mov_b32 s{sHA}, s{sHB}")
            if n == 37: so, imm = sHB6, 0
            else: so, imm = sHA, (n % 2)*2048
            s(f"buffer_load_dwordx4 {v(hb(n),4)}, v{vL16}, {srd(SH)}, s{so} offen offset:{imm} sc1")
            loads[n] = s(f"buffer_load_dwordx4 {v(hb(n)+4,4)}, v{vL16}, {srd(SH)}, s{so} offen offset:{imm+1024} sc1")
            if n % 2 == 1: s(f"s_add_u32 s{sHA}, s{sHA}, 4096")
        for n in range(NB): issue(n)
        XR = TMP
        T = vBT
        s(f"v_lshrrev_b32 v{T}, 3, v{vL}\nv_and_b32 v{vSV}, 7, v{vL}\nv_lshlrev_b32 v{vSV}, 4, v{vSV}\nv_lshl_add_u32 v{vSV}, v{T}, 10, v{vSV}")
        s(f"s_lshl_b32 s{sT1}, s{sTB}, 2\ns_add_u32 s{sT1}, s{sT1}, s{sW}\ns_lshl_b32 s{sT1}, s{sT1}, 14\ns_lshl_b32 s{sT2}, s{sCT}, 7\ns_add_u32 s{sT1}, s{sT1}, s{sT2}\ns_add_u32 s{sT2}, s{sT1}, 8192")
        pollB_txt = f"buffer_load_dwordx2 {v(MF,2)}, v{vQ1}, {srd(SS)}, s{sFB} offen sc1"
        RW, RR = VX, XA
        s(f"v_and_b32 v{RW}, 15, v{vL}\nv_lshlrev_b32 v{RW}, 8, v{RW}\nv_bfe_u32 v{T}, v{vL}, 4, 1\nv_lshl_add_u32 v{RW}, v{T}, 14, v{RW}")
        s(f"v_lshrrev_b32 v{T}, 5, v{vL}\nv_xor_b32 v{T}, v{T}, v{vL}\nv_and_b32 v{T}, 7, v{T}\nv_lshl_add_u32 v{RW}, v{T}, 4, v{RW}\nv_add_u32 v{RW}, s{sMW}, v{RW}")
        for i in (1, 2, 3): s(f"v_xor_b32 v{RW+i}, {32*i}, v{RW}")
        s(f"v_lshrrev_b32 v{T}, 3, v{vL}\nv_lshlrev_b32 v{RR}, 8, v{T}\nv_and_b32 v{RR+1}, 7, v{vL}\nv_lshlrev_b32 v{RR+1}, 1, v{RR+1}\nv_xor_b32 v{T}, v{T}, v{RR+1}")
        s(f"v_lshl_add_u32 v{RR}, v{T}, 4, v{RR}\ns_lshl_b32 s{sT3}, s{sW}, 14\nv_add_u32 v{RR}, s{sT3}, v{RR}\nv_xor_b32 v{RR+1}, 16, v{RR}")
        for n in range(38):
            if n == 32:
                s(f"s_cmp_eq_u32 s{sW}, 0\ns_cbranch_scc1 L_red")
            s.wait(vm=loads[n])
            for c2 in range(2):
                for t in range(2):
                    ac = v(ACC+32*c2+16*t, 16)
                    W_ = a(8*n+4*c2, 4) if n < 32 else v(W2B+8*(n-32)+4*c2, 4)
                    s(f"{MF32} {ac}, {W_}, {v(hb(n)+4*t,4)}, {'0' if n == 0 else ac}")
                    if c2 == 1 and t == 0:
                        if n == OPT.pollB_at: pb = s(pollB_txt)
                        if n == 4:
                            s(f"buffer_load_dwordx4 {v(XR,4)}, v{vSV}, {srd(SX)}, s{sT1} offen")
                            xl = s(f"buffer_load_dwordx4 {v(XR+4,4)}, v{vSV}, {srd(SX)}, s{sT2} offen")
            if n + NB == 32:
                s.wait(vm=pb)
                for _ in self.check([(MF, f"s{sTAG}"), (MF+1, f"s{sEP}")], [pollB_txt], "pb"): pass
            issue(n+NB)
        s.label("L_red")
        self.stamp(8)
        for c2 in range(2):
            for t in range(2):
                for i in range(4):
                    w = s(f"ds_write_b128 v{RW+i}, {v(ACC+32*c2+16*t+4*i,4)} offset:{t*32768+c2*128}")
        s.wait(lg=w)
        s("s_barrier")
        P = HB
        rds = {}
        for n in range(2):
            for wp in (1, 2, 3, 0):
                for h in range(2): rds[(n, wp)] = s(f"ds_read_b128 {v(P+32*n+8*wp+4*h,4)}, v{RR+h} offset:{wp*4096+n*2048}")
        s("s_waitcnt vmcnt(0)")
        s(f"s_mov_b32 s{sT3}, {hex(LOG2E | 0x80000000)}")
        for n in range(2):
            B = P+32*n
            s.wait(lg=rds[(n, 3)])
            for i in range(0, 8, 2): s(f"v_pk_add_f32 {v(B+8+i,2)}, {v(B+8+i,2)}, {v(B+16+i,2)}")
            for i in range(0, 8, 2): s(f"v_pk_add_f32 {v(B+8+i,2)}, {v(B+8+i,2)}, {v(B+24+i,2)}")
            for i in range(8): s(f"v_mul_f32 v{B+16+i}, s{sT3}, v{B+8+i}")
            for i in range(8): s(f"v_exp_f32 v{B+16+i}, v{B+16+i}")
            s.wait(lg=rds[(n, 0)])
            for i in range(0, 8, 2): s(f"v_pk_mul_f32 {v(B+i,2)}, {v(B+i,2)}, {v(B+8+i,2)}")
            for i in range(8): s(f"v_add_f32 v{B+16+i}, 1.0, v{B+16+i}")
            for i in range(8): s(f"v_rcp_f32 v{B+16+i}, v{B+16+i}")
            for i in range(4):
                s(f"v_lshlrev_b32 v{B+24+2*i}, 16, v{XR+4*n+i}\nv_and_b32 v{B+25+2*i}, 0xffff0000, v{XR+4*n+i}")
            for i in range(0, 8, 2): s(f"v_pk_fma_f32 {v(B+i,2)}, {v(B+i,2)}, {v(B+16+i,2)}, {v(B+24+i,2)}")
            for i in range(4): s(f"v_cvt_pk_bf16_f32 v{B+8+i}, v{B+2*i}, v{B+2*i+1}")
            s(f"buffer_store_dwordx4 {v(B+8,4)}, v{vSV}, {srd(SO)}, s{sT1 if n == 0 else sT2} offen")
        self.stamp(9)
        s.label("L_exit")
        s("s_endpgm")

HB = ACCB
W2B = 72

def items_before_gran(g):
    return ("w2p", 8)

def build(opt_over=None):
    o = OPT
    o.gran_after = 6; o.cs_delay = 10; o.flag_delay = 16; o.tail_flag_delay = 10; o.kv_poll_at = 8; o.kv_poll_wait = 16
    o.pollA_chunk = 16; o.pollB_at = 16; o.tail_pri = 4; o.tail_low = 2; o.join_drain = True; o.pf_lines = 3
    for k, val in (opt_over or {}).items(): setattr(o, k, val)
    g = Gen(); s = g.s
    g.prologue()
    nvm0, hist0 = s.nvm, list(s.hist)
    g.phase1("H"); g.tail("H")
    cH = s.count
    s("s_branch L_p2")
    s.label("L_typeQ")
    s.nvm = nvm0; s.hist = hist0
    g.phase1("Q"); g.tail("Q")
    s.label("L_p2")
    s("s_nop 7")
    g.phase2()
    body = s.text() + "".join(g.tailblocks) + "L_codeend:\n"
    head = f"""; fused LayerNorm + linear attention + GLU block, one persistent launch (generated by gen/kern.py)
; @launch grid=(256,1,1) block=(256,1,1) lds={LDS_BYTES}
.amdgcn_target "amdgcn-amd-amdhsa--gfx950"
.text
.globl {NAME}
.p2align 8
.type {NAME},@function
{NAME}:
"""
    foot = f""".section .rodata,"a"
.p2align 6
.amdhsa_kernel {NAME}
  .amdhsa_next_free_vgpr 512
  .amdhsa_next_free_sgpr 102
  .amdhsa_accum_offset 256
  .amdhsa_group_segment_fixed_size 0
  .amdhsa_kernarg_size 80
  .amdhsa_user_sgpr_count 2
  .amdhsa_user_sgpr_kernarg_segment_ptr 1
  .amdhsa_system_sgpr_workgroup_id_x 1
  .amdhsa_float_denorm_mode_32 3
.end_amdhsa_kernel
"""
    print(f"instrs {s.count} (H path {cH}) nop states {s.nops}", file=sys.stderr)
    return head + body + foot

if __name__ == "__main__":
    import json
    over = json.loads(sys.argv[2]) if len(sys.argv) > 2 else {}
    open(sys.argv[1], "w").write(build(over))
```

```python
import re

REG_RE = re.compile(r"\b([vas])(\d+)\b|\b([vas])\[(\d+):(\d+)\]|\b(vcc|exec|m0)\b")
TRANS = ("v_exp_f32", "v_log_f32", "v_rcp_f32", "v_rsq_f32", "v_sqrt_f32", "v_sin_f32", "v_cos_f32")

def regs_of(op):
    out = set()
    for m in REG_RE.finditer(op):
        if m.group(1): out.add((m.group(1), int(m.group(2))))
        elif m.group(3):
            for i in range(int(m.group(4)), int(m.group(5))+1): out.add((m.group(3), i))
        else: out.add((m.group(6), 0))
    return out

def split_ops(s):
    ops, cur, d = [], "", 0
    for ch in s:
        if ch == "[": d += 1
        if ch == "]": d -= 1
        if ch == "," and d == 0: ops.append(cur.strip()); cur = ""
        else: cur += ch
    if cur.strip(): ops.append(cur.strip())
    return ops

class Ins:
    def __init__(self, text):
        self.text = text
        t = text.split(";")[0].strip()
        parts = t.split(None, 1)
        self.mn = mn = parts[0]
        ops = split_ops(parts[1]) if len(parts) > 1 else []
        self.ops = ops
        R = [regs_of(o) for o in ops]
        allr = lambda l: set().union(*l) if l else set()
        self.w, self.r = set(), set()
        self.kind = "other"; self.srcc = set(); self.srcab = set(); self.wide = False; self.data = set()
        self.dpp = any(k in t for k in ("row_shr", "row_ror", "row_bcast", "quad_perm", "row_shl", "row_mirror", "row_half_mirror"))
        self.states = 1
        if mn.startswith("v_mfma"):
            self.kind = "mfma"; self.w = R[0]; self.srcab = R[1] | R[2]; self.srcc = R[3]; self.r = self.srcab | self.srcc
            self.passes = 8 if "32x32" in mn else 4
        elif mn.startswith("v_"):
            self.kind = "trans" if mn.startswith(TRANS) else ("dot" if mn.startswith("v_dot") else "valu")
            self.w = R[0]; self.r = allr(R[1:])
            if mn.startswith(("v_fmac", "v_dot2c")) or self.dpp: self.r |= R[0]
            if mn.startswith("v_permlane"): self.w = R[0] | R[1]; self.r = R[0] | R[1]
            if mn.startswith("v_cndmask") and len(ops) == 3: self.r.add(("vcc", 0))
        elif mn.startswith("ds_read"):
            self.kind = "ds"; self.w = R[0]; self.r = allr(R[1:])
        elif mn.startswith("ds_"):
            self.kind = "ds"; self.r = allr(R)
        elif mn.startswith(("buffer_load", "global_load")):
            self.kind = "vmem"
            if re.search(r"\blds\b", t): self.r = allr(R) | {("m0", 0)}; self.isdma = True
            else: self.w = R[0]; self.r = allr(R[1:])
        elif mn.startswith(("buffer_store", "global_store", "buffer_atomic")):
            self.kind = "vmem"; self.r = allr(R)
            if "x4" in mn or "x3" in mn: self.wide = True; self.data = R[0]
        elif mn.startswith("s_load"):
            self.kind = "smem"; self.w = R[0]; self.r = allr(R[1:])
        elif mn == "s_nop":
            self.kind = "nop"; self.states = int(ops[0]) + 1
        elif mn.startswith(("s_waitcnt", "s_barrier", "s_branch", "s_cbranch", "s_endpgm", "s_setprio", "s_sleep")):
            self.kind = "ctl"
        elif mn.startswith(("s_cmp", "s_bitcmp")):
            self.kind = "salu"; self.r = allr(R)
        elif mn.startswith(("s_memtime", "s_memrealtime")):
            self.kind = "smem"; self.w = R[0]
        elif mn.startswith("s_"):
            self.kind = "salu"; self.w = R[0]; self.r = allr(R[1:])
            if "saveexec" in mn: self.w |= {("exec", 0)}
        else:
            raise ValueError("unknown instr " + text)

def isv(k): return k in ("valu", "trans", "dot")

def required(p, c):
    need = 0
    vw = {x for x in p.w if x[0] in "va"}
    sw = {x for x in p.w if x[0] in ("s", "vcc")}
    if isv(p.kind):
        if c.kind == "mfma" and vw & c.r: need = max(need, 2)
        if isv(c.kind):
            if c.mn.startswith("v_permlane") and vw & c.r: need = max(need, 2)
            if c.dpp and vw & c.r: need = max(need, 2)
            if c.mn.startswith(("v_readfirstlane", "v_readlane")) and vw & c.r: need = max(need, 1)
            if sw & c.r: need = max(need, 2)
            if p.kind == "trans" and c.kind != "trans" and vw & c.r: need = max(need, 1)
            if p.kind == "dot" and vw & (c.r | c.w):
                if not (c.mn == p.mn and not (vw & (c.r - c.w))): need = max(need, 3)
        if c.kind == "vmem" and sw & c.r: need = max(need, 5)
        if c.kind in ("salu", "smem") and sw & c.r: need = max(need, 2)
        if p.kind == "dot" and c.kind in ("vmem", "ds", "mfma") and vw & c.r: need = max(need, 3)
    if p.kind == "mfma":
        big = 12 if p.passes == 8 else 8
        if c.kind == "mfma":
            if p.w & c.srcab: need = max(need, big)
            if p.w & c.srcc and not (p.w == c.srcc and p.passes == c.passes): need = max(need, big-2)
            if p.w & c.w and not (p.w == c.srcc): need = max(need, big-2)
        elif isv(c.kind) or c.kind in ("vmem", "ds"):
            if p.w & (c.r | c.w): need = max(need, big)
        if isv(c.kind) and p.srcc & c.w: need = max(need, 7 if p.passes == 8 else 3)
    if p.kind == "salu" and ("m0", 0) in p.w and c.kind == "vmem" and ("m0", 0) in c.r: need = max(need, 1)
    if p.wide and p.data & c.w: need = max(need, 2)
    return need

class Stream:
    def __init__(self):
        self.out = []
        self.hist = []
        self.nvm = 0; self.nlg = 0
        self.nops = 0
        self.count = 0
        self.lab = 0
        self.units = 0
        self.vmlog = []
        self.costfn = lambda i: 1
    def raw(self, text):
        self.out.append(text)
    def label(self, name, reset=True):
        self.out.append(name + ":")
    def newlabel(self, p="L"):
        self.lab += 1
        return f"{p}_{self.lab}"
    def comment(self, t): self.out.append("    ; " + t)
    def __call__(self, text):
        last = None
        for l in text.split("\n"):
            if l.strip(): last = self.emit(l.strip())
        return last
    def pad_needed(self, ins):
        dist = 0; need = 0
        for p in reversed(self.hist):
            need = max(need, required(p, ins) - dist)
            dist += p.states
            if dist >= 20: break
        return need
    def emit(self, text):
        ins = Ins(text)
        need = self.pad_needed(ins)
        if need > 0:
            n = Ins(f"s_nop {need-1}")
            self.out.append(f"    s_nop {need-1}"); self.hist.append(n); self.nops += need; self.units += need
        self.out.append("    " + text)
        self.hist.append(ins); self.hist = self.hist[-24:]
        self.count += 1; self.units += self.costfn(ins)
        if ins.kind == "vmem": self.nvm += 1; ins.vmseq = self.nvm; self.vmlog.append(ins)
        if ins.kind == "ds": self.nlg += 1; ins.lgseq = self.nlg
        return ins
    def wait(self, vm=None, lg=None):
        parts = []
        if vm is not None:
            n = vm if isinstance(vm, int) else self.nvm - vm.vmseq
            parts.append(f"vmcnt({min(n,63)})")
        if lg is not None:
            n = lg if isinstance(lg, int) else self.nlg - lg.lgseq
            parts.append(f"lgkmcnt({min(n,15)})")
        return self.emit("s_waitcnt " + " ".join(parts))
    def flush_hazards(self):
        self.emit("s_nop 11")
    def text(self):
        return "\n".join(self.out) + "\n"
```

```python
import sys, math
from emit import Stream

NAME = "recurrent_scan__linear_attn_block__glu_gated_glu__prompt_kernel"

EPOCH, STATS, FLAGA, FLAGB, KVFLAG = 0, 0x1000, 0x5000, 0x7000, 0x9000
COLSUM, KV, STAMP, SMALL = 0x10000, 0x40000, 0xC0000, 0x100000
H_OFF, TBB = 0x200000, 144*2048
H_BYTES = 32*TBB
OOB = 0x40000000
NSLOT, SLOT, XTRA = 9, 16384, 147456
LDS_BYTES = 163840
SX, SQ, SG, SU, SW, SO, SS, SH, SC = 24, 28, 32, 36, 40, 44, 48, 52, 56
sW, sTG, sCH, sRB, sJ, sTAG, sEP, sTB, sCT = 60, 61, 62, 63, 64, 65, 66, 67, 68
sOX, sOW, sMW, sLN2, sOH, sOF, sT0, sT1, sT2, sT3 = 69, 70, 71, 72, 73, 74, 75, 76, 77, 78
sCS = 79
sPO, sPP, sPS = 84, 85, 86
sOW2, sOW2B, sHA, sHB, sHB6, sFA, sFB, sKV, sKF, sEO, sCNT = 87, 88, 89, 90, 91, 92, 93, 94, 95, 96, 97
sST = 98
def srd(n): return f"s[{n}:{n+3}]"
vL, vL16 = 1, 2
VX, VW, XA, WA = 4, 8, 12, 16
vSV, vG0, vG1, vQ0, vQ1, vE3 = 18, 19, 20, 21, 22, 23
CS = 24
ST = 44
MF = 48
vC, vD = 56, 58
KF = 60
TMP = 64
WB = 96
ACCA, ACCB = 128, 192
vDT, vBT, vCK, vLT, vPFD = 3, 0, 15, 80, 255
sDT, sBT, sMK = 3, 0, 10
sROT, sR2, sR3, sR4 = 1, 20, 21, 84
def v(b, n=1): return f"v{b}" if n == 1 else f"v[{b}:{b+n-1}]"
def a(b, n=1): return f"a{b}" if n == 1 else f"a[{b}:{b+n-1}]"
LOG2E = 0x3fb8aa3b; LN2 = 0x3f317218
import struct
def f2u(x): return struct.unpack("<I", struct.pack("<f", x))[0]
MF32 = "v_mfma_f32_32x32x16_bf16"

class Opt:
    stamps = False
    dma_rate = {1: 0.62, 2: 0.40, 3: 0.40}
    budget = {1: 5, 2: 5, 3: 5}
    spin = 20000
    code_pf = True
    diag = None
    exp = None
    diag_n = 0
OPT = Opt()

def cost(ins):
    k = ins.kind
    if k == "vmem": return OPT.c_vm4 if "x4" in ins.mn else OPT.c_vm2
    if k == "trans": return 2
    if k == "ds": return OPT.c_dsw if ins.mn.startswith("ds_write_b128") else (OPT.c_ds128 if "b128" in ins.mn else 1)
    if k == "nop": return ins.states
    if ins.mn == "s_barrier": return OPT.c_bar
    if k in ("salu", "ctl", "smem"): return OPT.c_s
    return 1

class Gate:
    def __init__(self, fn): self.fn = fn

class Gen:
    def __init__(self):
        self.s = Stream()
        self.tailblocks = []
        self.log = []
        self.nstamp = 0
    STREG = [100, 98, 4, 6, 8, 12, 14, 16, 18, 22, 10]
    def stamp(self, i):
        if not OPT.stamps: return
        r = self.STREG[i]
        self.s(f"{'s_memtime' if OPT.stamps == 'cyc' else 's_memrealtime'} s[{r}:{r+1}]")
    def stamp_flush(self):
        if not OPT.stamps: return
        s = self.s
        s("s_waitcnt lgkmcnt(0)")
        s(f"s_lshl_b32 s{sT0}, s2, 2\ns_add_u32 s{sT0}, s{sT0}, s{sW}\ns_lshl_b32 s{sT0}, s{sT0}, 8\ns_add_u32 s{sT0}, s{sT0}, {STAMP}")
        s("s_mov_b64 exec, 1")
        for i, r in enumerate(self.STREG):
            s(f"v_mov_b32 v{64+i}, s{r}\nbuffer_store_dword v{64+i}, off, {srd(SS)}, s{sT0} offset:{4*i}")
    def check(self, pairs, reloads, name):
        s = self.s
        t = vCK
        def cmpseq(em):
            first = True
            for (r, e) in pairs:
                if first: em(f"v_xor_b32 v{t}, {e}, v{r}"); first = False
                else: em(f"v_bitop3_b32 v{t}, v{t}, v{r}, {e} bitop3:0xf6")
            em(f"v_cmp_ne_u32 vcc, 0, v{t}")
        lr, lb = f"L_retry_{name}", f"L_back_{name}"
        seq = []
        cmpseq(seq.append)
        for x in seq:
            s(x); yield
        s(f"s_cbranch_vccnz {lr}")
        s.label(lb)
        b = Stream()
        b.label(lr)
        b(f"s_mov_b32 s{sCNT}, {OPT.spin}")
        b.label(lr + "_loop")
        b("s_nop 4")
        for x in reloads: b(x)
        b("s_waitcnt vmcnt(0)")
        cmpseq(b)
        b(f"s_cbranch_vccz {lb}")
        b(f"s_sub_u32 s{sCNT}, s{sCNT}, 1\ns_cmp_lg_u32 s{sCNT}, 0")
        b(f"s_cbranch_scc1 {lr}_loop")
        b(f"s_branch {lb}")
        self.tailblocks.append(b.text())
        yield

    def prologue(self):
        s = self.s
        s("s_cmp_ge_u32 s2, 256")
        s("s_cbranch_scc1 L_exit")
        if OPT.diag == "fixed": s("s_memrealtime s[100:101]")
        self.stamp(0)
        s("s_load_dwordx16 s[4:19], s[0:1], 0")
        s("s_load_dwordx4 s[20:23], s[0:1], 64")
        if OPT.diag == "chase": s("s_mov_b64 s[100:101], s[0:1]")
        s(f"v_lshrrev_b32 v{vDT}, 6, v0")
        s(f"v_and_b32 v{vL}, 63, v0")
        s(f"v_readfirstlane_b32 s{sW}, v{vDT}")
        s(f"s_lshr_b32 s{sT0}, s2, 3")
        if OPT.code_pf:
            s(f"s_getpc_b64 s[{sST}:{sST+1}]")
            s(f"s_lshl_b32 s{sT1}, s{sT0}, 2\ns_add_u32 s{sT1}, s{sT1}, s{sW}\ns_mul_i32 s{sT1}, s{sT1}, {OPT.pf_lines*128}")
            s(f"v_min_u32 v{vDT}, {OPT.pf_lines-1}, v{vL}\nv_lshlrev_b32 v{vDT}, 7, v{vDT}\nv_add_u32 v{vDT}, s{sT1}, v{vDT}")
            s(f"v_min_u32 v{vDT}, L_codeend-{NAME}-256, v{vDT}")
            s(f"s_and_b32 s{sST}, s{sST}, 0xffffff80")
            s(f"global_load_dword v{vPFD}, v{vDT}, s[{sST}:{sST+1}]")
        s(f"v_lshlrev_b32 v{vL16}, 4, v{vL}")
        s(f"s_lshr_b32 s{sTG}, s{sW}, 1\ns_and_b32 s{sCH}, s{sW}, 1\ns_lshl_b32 s{sMW}, s{sW}, 12")
        s(f"s_and_b32 s{sRB}, s2, 1\ns_lshl_b32 s{sRB}, s{sRB}, 3\ns_and_b32 s{sT1}, s{sT0}, 7\ns_or_b32 s{sRB}, s{sRB}, s{sT1}")
        s(f"s_and_b32 s{sJ}, s2, 6\ns_bfe_u32 s{sT1}, s{sT0}, 0x10003\ns_or_b32 s{sJ}, s{sJ}, s{sT1}")
        T = TMP
        s(f"v_lshrrev_b32 v{T}, 3, v{vL}\nv_and_b32 v{T+1}, 7, v{vL}\nv_lshrrev_b32 v{T+2}, 4, v{vL}")
        s(f"v_xor_b32 v{T+3}, v{T+1}, v{T+2}\nv_lshlrev_b32 v{T+3}, 4, v{T+3}")
        s(f"v_lshl_add_u32 v{VX}, v{T}, 10, v{T+3}")
        s(f"v_xor_b32 v{VX+1}, 64, v{VX}\nv_add_u32 v{VX+1}, 7168, v{VX+1}")
        s(f"v_add_u32 v{VX+2}, {2*7168}, v{VX}\nv_add_u32 v{VX+3}, {2*7168}, v{VX+1}")
        s(f"v_lshrrev_b32 v{T+4}, 5, v{vL}\nv_and_b32 v{T+5}, 31, v{vL}\nv_lshlrev_b32 v{T+5}, 4, v{T+5}\nv_lshl_add_u32 v{T+5}, v{T+4}, 10, v{T+5}")
        s(f"s_lshr_b32 s{sT2}, s{sT0}, 4\ns_lshl_b32 s{sT2}, s{sT2}, 3\ns_add_u32 s{sT2}, s{sT2}, s{sJ}\ns_lshl_b32 s{sT2}, s{sT2}, 2\ns_add_u32 s{sT2}, s{sT2}, s{sW}\ns_lshl_b32 s{sT2}, s{sT2}, 1")
        s(f"s_lshl_b32 s{sT3}, s{sRB}, 7\ns_add_u32 s{sT2}, s{sT2}, s{sT3}")
        s(f"s_lshl_b32 s{sOF}, s{sT2}, 10")
        s(f"s_lshl_b32 s{sOX}, s{sW}, 5\ns_add_u32 s{sOX}, s{sOX}, s{sT3}\ns_lshl_b32 s{sOX}, s{sOX}, 10")
        self.piece_decode()
        for n, size in ((SX, 0x200000), (SQ, 1572864), (SG, 1835008), (SU, 1835008), (SS, SMALL)): s(f"s_mov_b32 s{n+2}, {size}\ns_mov_b32 s{n+3}, 0x20000")
        s("s_waitcnt lgkmcnt(0)")
        s(f"s_load_dword s{sEP}, s[22:23], {EPOCH}")
        self.stamp(1)
        if OPT.tlb:
            for p in (4, 6, 12, 14, 16, 8, 18): s(f"s_load_dword s{sCNT}, s[{p}:{p+1}], 0")
            if OPT.tlb > 1:
                s(f"s_add_u32 s{sFA}, s22, {H_OFF}\ns_addc_u32 s{sFA+1}, s23, 0")
                for i in range(5):
                    s(f"s_load_dword s{sCNT}, s[{sFA}:{sFA+1}], 0")
                    if i < 4: s(f"s_add_u32 s{sFA}, s{sFA}, 0x200000\ns_addc_u32 s{sFA+1}, s{sFA+1}, 0")
        if OPT.rot1: s(f"s_lshr_b32 s{sROT}, s{sT0}, 3\ns_xor_b32 s{sROT}, s{sROT}, s{sT0}\ns_and_b32 s{sROT}, s{sROT}, 1")
        else: s(f"s_mov_b32 s{sROT}, 0")
        s(f"s_lshl_b32 s{sBT}, s{sROT}, 9\ns_add_u32 s{sOX}, s{sOX}, s{sBT}")
        def mk(n, p, size): s(f"s_mov_b64 s[{n}:{n+1}], s[{p}:{p+1}]")
        mk(SX, 4, 0x200000)
        self.ld_st = [s(f"buffer_load_dwordx4 {v(T+8,4)}, v{T+5}, {srd(SX)}, s{sOF} offen"),
                      s(f"buffer_load_dwordx4 {v(T+12,4)}, v{T+5}, {srd(SX)}, s{sOF} offen offset:512")]
        self.piece_loads()
        s(f"s_mov_b32 m0, s{sMW}")
        for n in range(4): self.x0last = s(f"buffer_load_dwordx4 v{VX+n}, {srd(SX)}, s{sOX} offen offset:{n*1024} lds")
        s(f"s_add_u32 s{sOX}, s{sOX}, 128")
        mk(SQ, 6, 1572864); mk(SG, 12, 1835008); mk(SU, 14, 1835008); mk(SS, 22, SMALL)
        s(f"s_lshl_b32 s{sT2}, s{sT2}, 3\ns_add_u32 s{sDT}, s{sT2}, {STATS}")
        s(f"s_cmp_ge_u32 s{sT0}, 16")
        s("s_cbranch_scc1 L_typeQ")

    def wpattern(self, kind):
        T = vDT
        if kind in ("glu", "kv"):
            P = 3584 if kind == "glu" else 3072
            sh = 1024 if kind == "kv" else 0
            return [f"v_lshrrev_b32 v{T}, 2, v{vL}", f"v_and_b32 v{T}, 4, v{T}", f"v_xor_b32 v{T}, v{T}, v{vL}", f"v_and_b32 v{T}, 7, v{T}", f"v_lshlrev_b32 v{T}, 4, v{T}",
                    f"v_lshrrev_b32 v{VW}, 3, v{vL}", f"v_mul_u32_u24 v{VW}, {P}, v{VW}", f"v_add_u32 v{VW}, v{VW}, v{T}",
                    f"v_add_u32 v{VW+1}, {8*P-1024}, v{VW}", f"v_xor_b32 v{VW+2}, 32, v{VW}"] + ([f"v_add_u32 v{VW+2}, {sh}, v{VW+2}"] if sh else []) + [f"v_add_u32 v{VW+3}, {8*P-1024}, v{VW+2}"]
        if kind in ("q", "w2"):
            P = 3072 if kind == "q" else 1024
            R = VW if kind == "q" else VX
            return [f"v_lshrrev_b32 v{T}, 2, v{vL}", f"v_and_b32 v{T}, 4, v{T}", f"v_xor_b32 v{T}, v{T}, v{vL}", f"v_and_b32 v{T}, 7, v{T}", f"v_lshlrev_b32 v{T}, 4, v{T}",
                    f"v_lshrrev_b32 v{R}, 3, v{vL}", f"v_mul_u32_u24 v{R}, {P}, v{R}", f"v_add_u32 v{R}, v{R}, v{T}"] + [f"v_add_u32 v{R+n}, {n*(8*P-1024)}, v{R}" for n in (1, 2, 3)]
        if kind == "half":
            P = 3584
            return [f"v_and_b32 v{T}, 3, v{vL}", f"v_lshlrev_b32 v{T}, 4, v{T}", f"v_lshrrev_b32 v{VW}, 2, v{vL}", f"v_mul_u32_u24 v{VW}, {P}, v{VW}", f"v_add_u32 v{VW}, v{VW}, v{T}",
                    f"v_add_u32 v{VW+1}, {16*P-1024}, v{VW}", f"v_xor_b32 v{VW+2}, 32, v{VW}", f"v_add_u32 v{VW+3}, {16*P-1024}, v{VW+2}"]


    def rdpattern(self, kind, WA=WA):
        T = vBT
        o = [f"v_bfe_u32 v{T}, v{vL}, 2, 2", f"v_lshrrev_b32 v{WA+1}, 5, v{vL}"]
        if kind == "w2": o += [f"v_lshl_add_u32 v{T}, v{WA+1}, 2, v{T}"]
        else: o += [f"v_lshl_add_u32 v{T}, v{WA+1}, 3, v{T}"]
        if kind == "half":
            o += [f"v_lshlrev_b32 v{WA}, 6, v{T}", f"v_bfe_u32 v{T}, v{vL}, 4, 1", f"v_lshl_add_u32 v{WA}, v{T}, 11, v{WA}",
                  f"v_xor_b32 v{T}, s{sCH}, v{T}", f"v_lshl_add_u32 v{WA}, v{T}, 5, v{WA}"]
        else:
            o += [f"v_lshlrev_b32 v{WA}, 7, v{T}", f"v_and_b32 v{T}, 2, v{T}", f"v_bfe_u32 v{WA+1}, v{vL}, 4, 1", f"v_xor_b32 v{T}, v{T}, v{WA+1}"]
            if kind == "glu": o += [f"v_lshl_add_u32 v{WA}, v{WA+1}, 11, v{WA}"]
            if kind != "w2": o += [f"s_lshl_b32 s{sBT}, s{sCH}, 1", f"v_xor_b32 v{T}, s{sBT}, v{T}"]
            o += [f"v_lshl_add_u32 v{WA}, v{T}, 5, v{WA}"]
        o += [f"v_and_b32 v{T}, 3, v{vL}", f"v_lshl_add_u32 v{WA}, v{T}, 3, v{WA}"]
        if kind == "glu": o += [f"v_xor_b32 v{WA+1}, 32, v{WA}"]
        if kind == "kv": o += [f"v_xor_b32 v{WA+1}, 32, v{WA}", f"v_add_u32 v{WA+1}, 2048, v{WA+1}"]
        if kind == "w2": o += [f"v_add_u32 v{WA}, s{sMW}, v{WA}", f"v_xor_b32 v{WA+1}, 64, v{WA}"]
        return o

    def dma_task(self, typ):
        s = self.s
        items = []
        for st in range(8):
            if st: items.append(("x", st))
            items.append(("w1", st))
            if st == OPT.gran_after: items.append(("gran", 0))
            for key, at in OPT.touch.items():
                if at == st: items.append(("touch", key))
        for st in range(8, 16):
            items.append(("w2p", st))
            if st == OPT.gran_after: items.append(("gran", 0))
        for st in range(16, 20): items.append(("w3", st))
        for c in range(19): items.append(("v2", c))
        for kind, st in items:
            self.cur_item = (kind, st)
            if kind == "gran":
                yield Gate(lambda: self.gran_ready)
                for t in self.gran_loads: self.ld_gran = s(t); yield "d"
                self.gran_issued = True; self.log.append(f"gran@{self.slotno}")
                continue
            if kind == "touch":
                for sr_ in {1: [SW], 2: [SQ], 3: [SG, SU], 4: [SG, SU]}[st]:
                    i_ = s(f"buffer_load_dword v{MF+4}, v{MF-1+st}, {srd(sr_)}, 0 offen"); i_.lines = {1: 18, 2: 4, 3: 2, 4: 8}[st]; yield "d"
                self.last_of[(kind, st)] = i_
                continue
            if kind == "w2p" and st == 8:
                if typ == "H":
                    for t in self.wpattern("glu"): s(t); yield "c"
                s(f"s_mul_i32 s{sOW}, s{sJ}, 384"); yield "c"
                s(f"s_mul_i32 s{sDT}, s{sW}, {16*3584}"); yield "c"
                s(f"s_add_u32 s{sOW}, s{sOW}, s{sDT}"); yield "c"
                s(f"s_add_u32 s{sOW}, s{sOW}, {256 if typ=='H' else 128}"); yield "c"
            if kind == "w3" and st == 16:
                for t in self.wpattern("half" if typ == "H" else "q"): s(t); yield "c"
                if typ == "H":
                    s(f"s_lshl_b32 s{sOW}, s{sJ}, 6"); yield "c"
                    s(f"s_mul_i32 s{sDT}, s{sW}, {32*3584}"); yield "c"
                    s(f"s_add_u32 s{sOW}, s{sOW}, s{sDT}"); yield "c"
                    s(f"s_add_u32 s{sOW}, s{sOW}, {24*128}"); yield "c"
                else:
                    s(f"s_lshl_b32 s{sOW}, s{sJ}, 7"); yield "c"
                    s(f"s_mul_i32 s{sDT}, s{sW}, {32*3072}"); yield "c"
                    s(f"s_add_u32 s{sOW}, s{sOW}, s{sDT}"); yield "c"
            if kind == "v2" and st == 0:
                for t in self.wpattern("w2"): s(t); yield "c"
            if kind == "v2" and st == 16:
                s(f"s_mov_b32 s{sOW2}, s{sOW2B}"); yield "c"
            P = 3072 if (kind, typ) in (("w1", "H"), ("w3", "Q")) else 3584
            if (kind, st) in (("w1", 0), ("w2p", 8), ("w3", 16)):
                s(f"s_mul_i32 s{sR4}, s{sROT}, {256*P}"); yield "c"
                s(f"s_add_u32 s{sOW}, s{sOW}, s{sR4}"); yield "c"
            if (kind, st) in (("w1", 4), ("w2p", 12), ("w3", 18)):
                s(f"s_mul_i32 s{sR4}, s{sROT}, {512*P}"); yield "c"
                s(f"s_sub_u32 s{sOW}, s{sOW}, s{sR4}"); yield "c"
            if (kind, st) == ("x", 4):
                s(f"s_lshl_b32 s{sR4}, s{sROT}, 10"); yield "c"
                s(f"s_sub_u32 s{sOX}, s{sOX}, s{sR4}"); yield "c"
            if kind == "v2" and st < 16:
                s(f"s_lshl_b32 s{sDT}, s{sR2}, 15"); yield "c"
                s(f"s_add_u32 s{sDT}, s{sDT}, s{sOW2}"); yield "c"
                s(f"s_add_u32 s{sR2}, s{sR2}, 1"); yield "c"
                s(f"s_and_b32 s{sR2}, s{sR2}, 15"); yield "c"
            yield Gate(lambda: len(self.free) > 0)
            slot = self.free.pop(0)
            self.slot_of[(kind, st)] = slot
            self.log.append(f"{kind}{st}:{self.slotno:.0f}")
            s(f"s_add_u32 m0, s{sMW}, {slot*SLOT}"); yield "c"
            if kind == "x":
                for n in range(4):
                    last = s(f"buffer_load_dwordx4 v{VX+n}, {srd(SX)}, s{sOX} offen offset:{n*1024} lds"); yield "d"
                s(f"s_add_u32 s{sOX}, s{sOX}, 128"); yield "c"
            elif kind == "v2":
                for n in range(4):
                    last = s(f"buffer_load_dwordx4 v{VX+n}, {srd(SW)}, s{sDT if st < 16 else sOW2} offen offset:{n*1024} lds"); yield "d"
                if st >= 16: s(f"s_add_u32 s{sOW2}, s{sOW2}, {32*1024}"); yield "c"
            elif kind == "w3" and typ == "Q":
                for n in range(4):
                    last = s(f"buffer_load_dwordx4 v{VW+n}, {srd(SQ)}, s{sOW} offen offset:{n*1024} lds"); yield "d"
                s(f"s_add_u32 s{sOW}, s{sOW}, {128*3072}"); yield "c"
            else:
                kv = (kind == "w1" and typ == "H")
                sa, sb = (SQ, SQ) if kv else (SG, SU)
                step = 64*3072 if kv else (128*3584 if kind == "w3" else 64*3584)
                for n in range(4):
                    if n == 2: s(f"s_add_u32 m0, s{sMW}, {slot*SLOT+2048}"); yield "c"
                    last = s(f"buffer_load_dwordx4 v{VW+n}, {srd(sa if n < 2 else sb)}, s{sOW} offen offset:{(n&1)*1024} lds"); last.half = (kind == "w3"); yield "d"
                s(f"s_add_u32 s{sOW}, s{sOW}, {step}"); yield "c"
            self.last_of[(kind, st)] = last

    def dma_step(self, force_item=None, max_d=None):
        u0 = self.s.units
        while self.dma is not None:
            if force_item is not None:
                if force_item in self.last_of: break
            elif max_d is not None and max_d <= 0: break
            if self.dma_gate is not None:
                if not self.dma_gate.fn():
                    assert force_item is None, f"DMA blocked while forcing {force_item}"
                    break
                self.dma_gate = None
            try: r = next(self.dma)
            except StopIteration: self.dma = None; break
            if isinstance(r, Gate): self.dma_gate = r; continue
            if r == "d" and max_d is not None: max_d -= 1
        return self.s.units - u0

    def run_tasks(self, budget):
        s = self.s
        while budget > 0:
            progressed = False
            for t in list(self.tasks):
                if t["gate"] is not None:
                    if not t["gate"].fn(): continue
                    t["gate"] = None
                c0 = s.units
                try: r = next(t["gen"])
                except StopIteration:
                    self.tasks.remove(t); progressed = True
                    self.log.append(f"{t['gen'].__name__}@{self.slotno:.0f}"); break
                progressed = True
                if isinstance(r, Gate): t["gate"] = r; break
                last = s.hist[-1]
                if last.kind == "mfma": self.slotno += 1; return budget, True
                budget -= s.units - c0
                break
            if not progressed: break
        return budget, False

    def seq(self, L):
        def live(i):
            for t in L[i+1:]:
                m = t.split()[0]
                if m.startswith(("s_cselect", "s_addc")): return True
                if m.startswith("s_") and not m.startswith(("s_mov", "s_mul_i32")): break
            for t in L[i+1:]:
                m = t.split()[0]
                if m.startswith("v_cndmask"): return True
                if m.startswith("v_cmp"): break
            return False
        for i, t in enumerate(L):
            self.s(t)
            if not live(i): yield
    def add_task(self, gen): self.tasks.append({"gen": gen, "gate": None})
    def after_slots(self, n):
        t = self.slotno + n
        return Gate(lambda: self.slotno >= t or self.flush)
    def after_bar(self):
        t = self.nbar + 1
        return Gate(lambda: self.nbar >= t)

    def slack(self):
        k, st = self.cur_item
        if k == "v2": return 999
        if k == "touch": return 0
        if k == "gran": return 136 - self.mainslot
        return 16*(st-1) + 8 - self.mainslot
    def ta_update(self):
        s = self.s
        for ins in s.vmlog[self.ta_seen:]:
            lines = 8
            if "x2" in ins.mn: lines = 5 if "load" in ins.mn else 1
            if getattr(ins, "half", False): lines = 16
            lines = getattr(ins, "lines", lines)
            self.ta = max(self.ta, self.slotno + min(0, OPT.ta_init + self.slotno)) + lines*OPT.ta_line
            ins.land = self.ta + OPT.lat
        self.ta_seen = len(s.vmlog)
    def fill(self, p, u0):
        s = self.s
        while True:
            bud = OPT.budget[p]
            if self.boost: bud += OPT.boost
            b = bud - (s.units - u0) - self.debt
            self.ta_update()
            free = self.ta - self.slotno <= OPT.ta_ahead
            sl = self.slack()
            did = False
            if b > 0 and ((free and (sl <= OPT.lead or OPT.dma_first[p + (10 if self.typ == 'Q' else 0)])) or sl <= OPT.crit): b -= self.dma_step(max_d=1); did = True
            b, mf = self.run_tasks(b)
            self.ta_update()
            if not mf and not did and b >= 2 and self.ta - self.slotno <= OPT.ta_ahead: b -= self.dma_step(max_d=1)
            self.debt = max(0, -b) if not mf else 0
            if not mf: break
            u0 = s.units

    def stats_compute(self):
        s = self.s; T = TMP
        s.wait(vm=self.ld_st[1])
        self.stamp(2)
        s(f"v_mov_b32 v{T}, 0\nv_mov_b32 v{T+1}, 0\nv_mov_b32 v{T+2}, 0x3f803f80")
        for i in range(8): s(f"v_dot2c_f32_bf16 v{T}, v{T+8+i}, v{T+2}\nv_dot2c_f32_bf16 v{T+1}, v{T+8+i}, v{T+8+i}")
        for d in ("row_shr:1", "row_shr:2", "row_shr:4", "row_shr:8", "row_bcast:15 row_mask:0xa"):
            for r in (T, T+1):
                s(f"v_add_f32 v{r}, v{r}, v{r} {d}" + ("" if "mask" in d else " row_mask:0xf") + " bank_mask:0xf" + (" bound_ctrl:1" if "shr" in d else ""))
        s(f"v_mul_f32 v{T}, {hex(f2u(1/512))}, v{T}\nv_mul_f32 v{T+1}, {hex(f2u(1/512))}, v{T+1}")
        s(f"v_fma_f32 v{T+1}, -v{T}, v{T}, v{T+1}\nv_max_f32 v{T+1}, 0, v{T+1}")
        s(f"v_cvt_pk_bf16_f32 v{T+2}, v{T}, v{T+1}")
        s(f"v_and_b32 v{T+1}, 0xffff0000, v{T+2}\nv_add_f32 v{T+1}, {hex(f2u(1e-5))}, v{T+1}")
        s(f"v_cvt_pk_bf16_f32 v{T+1}, v{T+1}, v{T+1}\nv_and_b32 v{T+1}, 0xffff0000, v{T+1}\nv_sqrt_f32 v{T+1}, v{T+1}")
        s(f"v_cvt_pk_bf16_f32 v{T+1}, v{T+1}, v{T+1}")
        s(f"s_mov_b32 s{sT3}, 0xffff\nv_bfi_b32 v{T+2}, s{sT3}, v{T+2}, v{T+1}")
        s("s_waitcnt lgkmcnt(0)")
        s(f"s_mul_i32 s{sEP}, s{sEP}, 0x9E3779B1\ns_add_u32 s{sEP}, s{sEP}, 0x7F4A7C15\ns_and_b32 s{sTAG}, s{sEP}, 0xBFFFBFFF")
        s(f"v_mov_b32 v{T+3}, s{sTAG}\nv_lshlrev_b32 v{T+4}, 3, v{T+4}")
        s("s_mov_b32 exec_lo, 0x80000000\ns_mov_b32 exec_hi, 0x80000000")
        s(f"buffer_store_dwordx2 {v(T+2,2)}, v{T+4}, {srd(SS)}, s{sDT} offen sc1")
        s("s_mov_b64 exec, -1")
        s(f"v_and_b32 v{vE3}, s{sTAG}, v{vE3}")

    def piece_decode(self):
        s = self.s
        lc = sHB
        s(f"s_and_b32 s{sT1}, s2, 1\ns_lshl_b32 s{sT1}, s{sT1}, 5\ns_add_u32 s{sT1}, s{sT1}, s{sT0}")
        s(f"s_mul_i32 s{lc}, s{sT1}, 43691\ns_lshr_b32 s{lc}, s{lc}, 17")
        s(f"s_mul_i32 s{sPS}, s{lc}, 3\ns_sub_u32 s{sT1}, s{sT1}, s{sPS}")
        A, B, Cc, Dd = sOW2, sOW2B, sHA, sPO
        s(f"s_lshr_b32 s{A}, s{lc}, 1\ns_add_u32 s{A}, s{A}, 1\ns_cmp_eq_u32 s{A}, 3\ns_cselect_b32 s{A}, 0, s{A}\ns_lshl_b32 s{A}, s{A}, 3")
        s(f"s_and_b32 s{B}, s2, 6\ns_add_u32 s{A}, s{A}, s{B}\ns_and_b32 s{Cc}, s{lc}, 1\ns_add_u32 s{A}, s{A}, s{Cc}")
        s(f"s_cmp_ge_u32 s{lc}, 13\ns_cselect_b32 s{Cc}, 13, 6\ns_cselect_b32 s{sPS}, 52, 24\ns_sub_u32 s{Cc}, s{lc}, s{Cc}")
        s(f"s_mul_i32 s{Dd}, s{B}, 3\ns_add_u32 s{Dd}, s{Dd}, s{Cc}\ns_lshr_b32 s{B}, s{B}, 1\ns_add_u32 s{B}, s{B}, 24")
        s(f"s_cmp_eq_u32 s{Cc}, 6\ns_cselect_b32 s{B}, s{B}, s{Dd}\ns_add_u32 s{Cc}, s{sPS}, s{B}")
        s(f"s_cmp_lt_u32 s{lc}, 6\ns_mov_b32 s{SC+2}, 1835008\ns_cselect_b32 s{SC+2}, 1572864, s{SC+2}")
        s(f"s_cselect_b32 s{Cc}, s{A}, s{Cc}\ns_cselect_b32 s{B}, s{A}, s{B}\ns_movk_i32 s{A}, 3584\ns_cselect_b32 s{A}, 3072, s{A}\ns_mov_b32 s{SC+3}, 0x20000")
        s(f"s_lshl_b32 s{sPP}, s{A}, 3")
        s(f"s_lshl_b32 s{Dd}, s{sT1}, 2\ns_add_u32 s{Dd}, s{Dd}, s{sW}\ns_mul_i32 s{Dd}, s{Dd}, 6\ns_mul_i32 s{sPO}, s{Dd}, s{sPP}")
        s(f"s_lshl_b32 s{B}, s{B}, 7\ns_add_u32 s{sPO}, s{sPO}, s{B}")
        s(f"s_lshl_b32 s{sPS}, s{Cc}, 11\ns_lshl_b32 s{sT1}, s{sT1}, 9\ns_add_u32 s{sPS}, s{sPS}, s{sT1}\ns_add_u32 s{sPS}, s{sPS}, {COLSUM}")
        s(f"s_cmp_lg_u32 s{sW}, 0\ns_cselect_b32 s{sPS}, {OOB}, s{sPS}")
        s(f"s_cmp_ge_u32 s{lc}, 20\ns_cselect_b32 s{sPS}, {OOB}, s{sPS}\ns_cselect_b32 s{sPO}, {OOB}, s{sPO}")
        T = vDT
        s(f"v_lshrrev_b32 v{vSV}, 3, v{vL}\nv_mul_u32_u24 v{vSV}, s{A}, v{vSV}\nv_and_b32 v{T}, 7, v{vL}\nv_lshl_add_u32 v{vSV}, v{T}, 4, v{vSV}")
    def piece_loads(self):
        s = self.s; lc = sHB
        s(f"s_cmp_ge_u32 s{lc}, 13\ns_cselect_b32 s{SC}, s14, s12\ns_cselect_b32 s{SC+1}, s15, s13")
        s(f"s_cmp_lt_u32 s{lc}, 6\ns_cselect_b32 s{SC}, s6, s{SC}\ns_cselect_b32 s{SC+1}, s7, s{SC+1}")
        self.ld_cs = []
        for n in range(6):
            self.ld_cs.append(s(f"buffer_load_dwordx4 {v(CS+4*n,4)}, v{vSV}, {srd(SC)}, s{sPO} offen"))
            if n < 5: s(f"s_add_u32 s{sPO}, s{sPO}, s{sPP}")

    def late_setup(self, typ):
        s = self.s
        def mk(n, p, size):
            for t in (f"s_mov_b32 s{n}, s{p}", f"s_mov_b32 s{n+1}, s{p+1}", f"s_mov_b32 s{n+2}, {size}", f"s_mov_b32 s{n+3}, 0x20000"): yield t
        L = []
        L += list(mk(SO, 18, 0x200000))
        L += [f"s_add_u32 s{SH}, s22, {H_OFF}", f"s_addc_u32 s{SH+1}, s23, 0", f"s_mov_b32 s{SH+2}, {H_BYTES}", f"s_mov_b32 s{SH+3}, 0x20000"]
        L += [f"s_mov_b32 s{sLN2}, {hex(LN2)}"]
        if typ == "Q":
            L += [f"s_mul_i32 s{sCS}, s{sJ}, {3*2048}", f"s_lshl_b32 s{sT1}, s{sCH}, 8", f"s_add_u32 s{sCS}, s{sCS}, s{sT1}", f"s_add_u32 s{sCS}, s{sCS}, {COLSUM+24*2048}",
                  f"s_add_u32 s{sCS+1}, s{sCS}, 128", f"s_add_u32 s{sCS+2}, s{sCS}, 2048", f"s_add_u32 s{sCS+3}, s{sCS}, {2048+128}",
                  f"s_lshl_b32 s{sCS+4}, s{sJ}, 11", f"s_add_u32 s{sCS+4}, s{sCS+4}, s{sT1}", f"s_add_u32 s{sCS+4}, s{sCS+4}, {COLSUM}"]
            pats = ["g", "g", "g", "g", "q"]
        else:
            L += [f"s_lshl_b32 s{sCS}, s{sJ}, 11", f"s_lshl_b32 s{sT1}, s{sCH}, 8", f"s_add_u32 s{sCS}, s{sCS}, s{sT1}", f"s_add_u32 s{sCS+1}, s{sCS}, {COLSUM+16*2048}", f"s_add_u32 s{sCS}, s{sCS}, {COLSUM+8*2048}",
                  f"s_mul_i32 s{sCS+2}, s{sJ}, {3*2048}", f"s_add_u32 s{sCS+2}, s{sCS+2}, s{sT1}", f"s_add_u32 s{sCS+2}, s{sCS+2}, {COLSUM+26*2048}", f"s_add_u32 s{sCS+3}, s{sCS+2}, 128",
                  f"s_lshr_b32 s{sCS+4}, s{sJ}, 1", f"s_lshl_b32 s{sCS+4}, s{sCS+4}, 11", f"s_and_b32 s{sT1}, s{sJ}, 1", f"s_lshl_b32 s{sT1}, s{sT1}, 1", f"s_add_u32 s{sT1}, s{sT1}, s{sCH}", f"s_lshl_b32 s{sT1}, s{sT1}, 7",
                  f"s_add_u32 s{sCS+4}, s{sCS+4}, s{sT1}", f"s_add_u32 s{sCS+4}, s{sCS+4}, {COLSUM+48*2048}"]
            pats = ["q", "q", "g", "g", "g"]
        L += [f"s_lshl_b32 s{sT1}, s{sRB}, 1", f"s_add_u32 s{sT1}, s{sT1}, s{sTG}", f"s_mul_i32 s{sOH}, s{sT1}, {TBB}",
              f"s_lshl_b32 s{sOF}, s{sT1}, 5", f"s_lshl_b32 s{sT2}, s{sJ}, 1", f"s_add_u32 s{sT2}, s{sT2}, s{sCH}", f"s_add_u32 s{sOF}, s{sOF}, s{sT2}",
              f"s_add_u32 s{sOF}, s{sOF}, {16 if typ=='Q' else 0}", f"s_lshl_b32 s{sOF}, s{sOF}, 3"]
        L += [f"s_lshl_b32 s{sT2}, s{sT2}, 1", f"s_add_u32 s{sT3}, s{sT2}, s{sTG}"]
        if typ == "Q":
            L += [f"s_lshl_b32 s{sKV}, s{sT3}, 14", f"s_add_u32 s{sKV}, s{sKV}, {KV}", f"s_lshl_b32 s{sKF}, s{sT3}, 7", f"s_add_u32 s{sKF}, s{sKF}, {KVFLAG}",
                  f"s_or_b32 s{sT3}, s{sRB}, s{sJ}", f"s_or_b32 s{sT3}, s{sT3}, s{sW}", f"s_cmp_eq_u32 s{sT3}, 0", f"s_cselect_b32 s{sEO}, {EPOCH}, {OOB}"]
        else:
            L += [f"s_lshl_b32 s{sKV}, s{sT3}, 4", f"s_add_u32 s{sKV}, s{sKV}, s{sRB}", f"s_lshl_b32 s{sKF}, s{sKV}, 3", f"s_add_u32 s{sKF}, s{sKF}, {KVFLAG}",
                  f"s_lshl_b32 s{sKV}, s{sKV}, 10", f"s_add_u32 s{sKV}, s{sKV}, {KV}",
                  f"s_cmp_eq_u32 s{sTG}, 0", f"s_cselect_b32 s{sEO}, {OOB}, s{sKV}", f"s_cselect_b32 s{sKV}, s{sKV}, {OOB}"]
        L += [f"s_and_b32 s{sTB}, s2, 7", f"s_lshl_b32 s{sTB}, s{sTB}, 2", f"s_bfe_u32 s{sT2}, s2, 0x20003", f"s_or_b32 s{sTB}, s{sTB}, s{sT2}", f"s_lshr_b32 s{sCT}, s2, 5",
              f"s_cmp_eq_u32 s{sW}, 0", f"s_cselect_b32 s{SW}, s8, s16", f"s_cselect_b32 s{SW+1}, s9, s17", f"s_mov_b32 s{SW+2}, 1835008", f"s_cselect_b32 s{SW+2}, 524288, s{SW+2}", f"s_mov_b32 s{SW+3}, 0x20000",
              f"s_cselect_b32 s{sT2}, 1, s{sW}", f"s_sub_u32 s{sT2}, s{sT2}, 1",
              f"s_lshl_b32 s{sOW2}, s{sT2}, 19", f"s_lshl_b32 s{sT3}, s{sCT}, 7", f"s_add_u32 s{sOW2}, s{sOW2}, s{sT3}",
              f"s_mul_i32 s{sHB}, s{sT2}, 5", f"s_min_u32 s{sHB6}, s{sT2}, 1", f"s_add_u32 s{sHB}, s{sHB}, s{sHB6}", f"s_add_u32 s{sHB}, s{sHB}, 96",
              f"s_lshl_b32 s{sOW2B}, s{sHB}, 14", f"s_add_u32 s{sOW2B}, s{sOW2B}, s{sT3}",
              f"s_mul_i32 s{sT3}, s{sTB}, {TBB}", f"s_lshl_b32 s{sHB}, s{sHB}, 11", f"s_add_u32 s{sHB}, s{sHB}, s{sT3}",
              f"s_lshl_b32 s{sHA}, s{sT2}, 16", f"s_add_u32 s{sHA}, s{sHA}, s{sT3}",
              f"s_add_u32 s{sHB6}, s{sHB}, {5*2048}", f"s_cmp_eq_u32 s{sW}, 1", f"s_cselect_b32 s{sHB6}, s{sHB6}, {OOB}",
              f"s_lshl_b32 s{sFA}, s{sTB}, 8", f"s_add_u32 s{sFB}, s{sFA}, {FLAGB}", f"s_add_u32 s{sFA}, s{sFA}, {FLAGA}",
              f"s_add_u32 s{sT3}, s{sHA}, {112*2048}", f"s_add_u32 s{sT2}, s{sFB}, 128",
              f"s_cmp_eq_u32 s{sW}, 0", f"s_cselect_b32 s{sHA}, s{sT3}, s{sHA}", f"s_cselect_b32 s{sHB}, {OOB}, s{sHB}", f"s_cselect_b32 s{sOW2B}, {OOB}, s{sOW2B}",
              f"s_cselect_b32 s{sFA}, s{sT2}, s{sFA}", f"s_cselect_b32 s{sFB}, s{sT2}, s{sFB}"]
        if OPT.rot2:
            L += [f"s_bfe_u32 s{sR2}, s2, 0x20003", f"s_lshl_b32 s{sR2}, s{sR2}, 2"]
            if OPT.rot2 == 2: L += [f"s_and_b32 s{sR3}, s{sCT}, 1", f"s_lshl_b32 s{sR3}, s{sR3}, 3", f"s_xor_b32 s{sR2}, s{sR2}, s{sR3}"]
        else: L += [f"s_mov_b32 s{sR2}, 0"]
        L += [f"s_mov_b32 s{sR3}, s{sR2}"]
        if OPT.touch:
            U = MF; T = vLT
            def lim(r, n): return [f"v_cmp_gt_u32 vcc, {n}, v{vL}", f"v_cndmask_b32 v{r}, v{T+1}, v{r}, vcc"]
            L += [f"v_mov_b32 v{T+1}, {OOB}", f"s_lshl_b32 s{sT2}, s2, 2", f"s_add_u32 s{sT2}, s{sT2}, s{sW}"]
            if 1 in OPT.touch:
                L += [f"s_mul_i32 s{sT3}, s2, 3", f"s_add_u32 s{sT3}, s{sT3}, s{sW}", f"s_sub_u32 s{sT3}, s{sT3}, 1", f"s_mul_i32 s{sT3}, s{sT3}, 19", f"s_lshl_b32 s{sBT}, s2, 4",
                      f"s_cmp_eq_u32 s{sW}, 0", f"s_cselect_b32 s{sT3}, s{sBT}, s{sT3}", f"s_cselect_b32 s{sBT}, 16, 19",
                      f"v_add_u32 v{U}, s{sT3}, v{vL}", f"v_lshlrev_b32 v{U}, 7, v{U}"] + lim(U, f"s{sBT}")
            if 2 in OPT.touch:
                L += [f"v_lshl_add_u32 v{U+1}, s{sT2}, 2, v{vL}", f"v_lshrrev_b32 v{T}, 3, v{U+1}", f"v_mul_u32_u24 v{T}, 3072, v{T}", f"v_and_b32 v{U+1}, 7, v{U+1}", f"v_lshl_add_u32 v{U+1}, v{U+1}, 7, v{T}"] + lim(U+1, 4)
            if 3 in OPT.touch:
                L += [f"v_lshl_add_u32 v{U+2}, s{sT2}, 1, v{vL}", f"v_lshrrev_b32 v{T}, 2, v{U+2}", f"v_mul_u32_u24 v{T}, 3584, v{T}", f"v_and_b32 v{U+2}, 3, v{U+2}", f"v_lshl_add_u32 v{U+2}, v{U+2}, 7, v{T}", f"v_add_u32 v{U+2}, 3072, v{U+2}"] + lim(U+2, 2)
            if 4 in OPT.touch:
                L += [f"v_lshl_add_u32 v{U+3}, s{sT2}, 3, v{vL}", f"v_lshrrev_b32 v{T}, 4, v{U+3}", f"v_mul_u32_u24 v{T}, 3584, v{T}", f"v_bfe_u32 v{T+2}, v{U+3}, 1, 3", f"v_mul_u32_u24 v{T+2}, 384, v{T+2}", f"v_add_u32 v{T}, v{T}, v{T+2}",
                      f"v_and_b32 v{U+3}, 1, v{U+3}", f"v_lshl_add_u32 v{U+3}, v{U+3}, 7, v{T}", f"v_add_u32 v{U+3}, 128, v{U+3}"] + lim(U+3, 8)
        T = vLT
        L += [f"v_lshrrev_b32 v{vE3}, 5, v{vL}",
              f"v_and_b32 v{vQ1}, 31, v{vL}", f"v_lshlrev_b32 v{vQ1}, 3, v{vQ1}", f"v_lshl_add_u32 v{vQ0}, v{vE3}, 10, v{vQ1}",
              f"v_and_b32 v{vG1}, 0x78, v{vQ1}", f"v_bfe_u32 v{T}, v{vL}, 4, 1", f"v_mul_u32_u24 v{T}, {28*2048}, v{T}", f"v_add_u32 v{vG1}, v{vG1}, v{T}", f"v_lshl_add_u32 v{vG0}, v{vE3}, 10, v{vG1}",
              f"v_lshl_add_u32 v{vG1}, v{vE3}, 30, v{vG1}"]
        L += [f"s_lshl_b32 s{sT1}, s{sT1}, 9", f"s_add_u32 s{sT1}, s{sT1}, {STATS}", f"v_add_u32 v{vSV}, s{sT1}, v{vQ1}",
             f"v_lshl_add_u32 v{vQ1}, v{vE3}, 30, v{vQ1}",
             f"v_add_u32 v{vE3}, -1, v{vE3}"]
        yield from self.seq(L)
        gl = [f"buffer_load_dwordx2 {v(ST,2)}, v{vSV}, {srd(SS)}, 0 offen sc1", f"buffer_load_dwordx2 {v(ST+2,2)}, v{vSV}, {srd(SS)}, 0 offen offset:256 sc1"]
        for u, p in enumerate(pats):
            r0, r1 = (vG0, vG1) if p == "g" else (vQ0, vQ1)
            gl += [f"buffer_load_dwordx2 {v(CS+4*u,2)}, v{r0}, {srd(SS)}, s{sCS+u} offen sc1", f"buffer_load_dwordx2 {v(CS+4*u+2,2)}, v{r1}, {srd(SS)}, s{sCS+u} offen offset:512 sc1"]
        self.gran_loads = gl
        self.gran_ready = True
        if typ == "H":
            for i in range(4): s(f"v_mov_b32 v{KF+i}, 0x3f803f80"); yield
        else:
            L = [f"v_and_b32 v{T}, 1, v{vL}", f"v_lshlrev_b32 v{T}, 4, v{T}", f"v_lshlrev_b32 v{T}, v{T}, v{KF}",
                 f"v_lshrrev_b32 v{KF}, 3, v{vL}", f"v_xor_b32 v{KF}, v{KF}, v{vL}", f"v_and_b32 v{KF}, 4, v{KF}", f"v_and_b32 v{KF+1}, 16, v{vL}", f"v_or_b32 v{KF}, v{KF}, v{KF+1}",
                 f"v_bfe_u32 v{KF+1}, v{vL}, 1, 1", f"v_or_b32 v{KF}, v{KF}, v{KF+1}", f"v_bfe_u32 v{KF+1}, v{vL}, 3, 1", f"v_lshl_or_b32 v{KF+3}, v{KF+1}, 1, v{KF}"]
            s(f"v_mov_b32 v{KF}, 0x3f80"); yield
            for i in range(4): L += [f"v_cmp_eq_u32 vcc, {i}, v{KF+3}", f"v_cndmask_b32 v{KF+i}, 0, v{T}, vcc"]
            yield from self.seq(L)

    def colsum_pre(self):
        s = self.s; T = CS; A = TMP+24; U = TMP+16
        s(f"v_mov_b32 v{U}, 0x3f80\nv_mov_b32 v{U+1}, 0x3f800000")
        for e in range(8): s(f"v_mov_b32 v{A+e}, 0")
        s(f"v_and_b32 v{U+2}, 7, v{vL}\nv_lshlrev_b32 v{U+2}, 3, v{U+2}\nv_lshrrev_b32 v{U+3}, 3, v{vL}\nv_or_b32 v{U+2}, v{U+2}, v{U+3}\nv_lshlrev_b32 v{U+2}, 4, v{U+2}")
        s(f"s_lshl_b32 s{sPP}, s{sW}, 2\ns_add_u32 s{sPP}, s{sPP}, {XTRA+2048}\nv_add_u32 v{U+2}, s{sPP}, v{U+2}")
        for n in range(6):
            if n % 2 == 0: s.wait(vm=self.ld_cs[n+1])
            for r in range(4): s(f"v_dot2c_f32_bf16 v{A+2*r}, v{T+4*n+r}, v{U}\nv_dot2c_f32_bf16 v{A+2*r+1}, v{T+4*n+r}, v{U+1}")
        for e in range(4): s(f"v_permlane32_swap_b32 v{A+e}, v{A+e+4}")
        for e in range(4): s(f"v_add_f32 v{A+e}, v{A+e}, v{A+e+4}")
        for e in range(2): s(f"v_permlane16_swap_b32 v{A+e}, v{A+e+2}")
        for e in range(2): s(f"v_add_f32 v{A+e}, v{A+e}, v{A+e+2}")
        s(f"v_add_u32 v{TMP+1}, {XTRA+2048}, v{vL16}\nv_lshrrev_b32 v{TMP+8}, 1, v{vL16}")
        s(f"v_add_f32 v{A+2}, v{A}, v{A} row_ror:8 row_mask:0xf bank_mask:0x3")
        s(f"v_add_f32 v{A+2}, v{A+1}, v{A+1} row_ror:8 row_mask:0xf bank_mask:0xc")
        self.pend_w = s(f"ds_write_b32 v{U+2}, v{A+2}")

    def colsum_task(self, rd):
        s = self.s; T = TMP
        s.wait(lg=rd); yield
        for x in (f"v_add_f32 v{T+4}, v{T+4}, v{T+5}", f"v_add_f32 v{T+6}, v{T+6}, v{T+7}", f"v_mov_b32 v{T+7}, s{sTAG}", f"v_add_f32 v{T+4}, v{T+4}, v{T+6}",
                  f"v_cvt_pk_bf16_f32 v{T+5}, v{T+4}, v{T+4}", f"v_lshlrev_b32 v{T+5}, 16, v{T+5}", f"v_sub_f32 v{T+5}, v{T+4}, v{T+5}",
                  f"v_cvt_pk_bf16_f32 v{T+6}, v{T+4}, v{T+5}", f"buffer_store_dwordx2 {v(T+6,2)}, v{T+8}, {srd(SS)}, s{sPS} offen sc1"): s(x); yield

    def prep_task(self, typ):
        s = self.s
        yield Gate(lambda: self.gran_issued)
        yield self.after_slots(OPT.gran_wait)
        s.wait(vm=self.ld_gran); yield
        pairs = [(ST+1, f"s{sTAG}"), (ST+3, f"s{sTAG}")]
        for u in range(5): pairs += [(CS+4*u+1, f"s{sTAG}"), (CS+4*u+3, f"v{vE3}")]
        yield from self.check(pairs, self.gran_loads, typ + "g")
        for t in range(2):
            g = ST+2*t
            for x in (f"v_and_b32 v{vD+t}, 0xffff0000, v{g}", f"v_xor_b32 v{g}, 0x8000, v{g}", f"v_rcp_f32 v{vC+t}, v{vD+t}",
                      f"v_perm_b32 v{MF+4*t}, v{g}, v{g}, s{sT2}" , f"v_mov_b32 v{MF+4*t+1}, 0", f"v_mov_b32 v{MF+4*t+2}, v{MF+4*t}", f"v_mov_b32 v{MF+4*t+3}, 0",
                      f"v_mul_f32 v{vC+t}, {hex(LOG2E)}, v{vC+t}"):
                if "perm" in x and t == 0: s(f"s_mov_b32 s{sT2}, 0x01000100"); yield
                s(x); yield
        for u in range(2):
            for t in range(2):
                ac = v(ACCA+32*u+16*t, 16)
                A_, B_ = v(CS+4*u, 4), v(MF+4*t, 4)
                if typ == "H": A_, B_ = B_, A_
                s(f"{MF32} {ac}, {A_}, {B_}, {ac}"); yield
        self.prep_done = True; self.prep_slot = self.slotno
        for u in range(2):
            for t in range(2):
                yield self.after_slots(4)
                ac = v(ACCB+32*u+16*t, 16)
                s(f"{MF32} {ac}, {v(CS+8+4*u,4)}, {v(MF+4*t,4)}, {ac}"); yield

    def corr3_task(self):
        s = self.s
        for t in range(2):
            yield self.after_slots(3)
            ac = v(ACCA+16*t, 16)
            s(f"{MF32} {ac}, {v(CS+16,4)}, {v(MF+4*t,4)}, {ac}"); yield

    def glu_ep(self, R, t, soff, imm):
        s = self.s
        G, U = R, R+8
        for i in range(8): s(f"v_mul_f32 v{G+i}, v{vC+t}, v{G+i}"); yield
        for i in range(8): s(f"v_exp_f32 v{G+i}, -v{G+i}"); yield
        for i in range(8): s(f"v_fma_f32 v{G+i}, v{G+i}, v{vD+t}, v{vD+t}"); yield
        for i in range(8): s(f"v_rcp_f32 v{G+i}, v{G+i}"); yield
        for i in range(8): s(f"v_mul_f32 v{U+i}, v{U+i}, v{G+i}"); yield
        for i in range(4): s(f"v_cvt_pk_bf16_f32 v{G+i}, v{U+2*i}, v{U+2*i+1}"); yield
        self.last_store = s(f"buffer_store_dwordx4 {v(G,4)}, v{vL16}, {srd(SH)}, s{soff} offen offset:{imm} sc1"); yield

    def glu_pass(self, base, ku_mul, ku_add):
        s = self.s
        for x in (f"s_mul_i32 s{sT1}, s{sJ}, {ku_mul}", f"s_lshl_b32 s{sT2}, s{sCH}, 1", f"s_add_u32 s{sT1}, s{sT1}, s{sT2}", f"s_add_u32 s{sT1}, s{sT1}, {ku_add}",
                  f"s_lshl_b32 s{sT1}, s{sT1}, 11", f"s_add_u32 s{sT1}, s{sT1}, s{sOH}"): s(x); yield
        for u in range(2):
            for t in range(2):
                yield from self.glu_ep(base+32*u+16*t, t, sT1, u*2048+t*1024)
            self.kv_safe = True

    def flag(self, base, delay):
        s = self.s
        st = self.last_store
        yield self.after_slots(delay)
        r = ST
        s(f"v_mov_b32 v{r}, s{sTAG}"); yield
        s(f"v_mov_b32 v{r+1}, s{sEP}"); yield
        s(f"s_add_u32 s{sT3}, s{sOF}, {base}")
        s.wait(vm=st)
        s("s_mov_b64 exec, 1")
        s(f"buffer_store_dwordx2 {v(r,2)}, off, {srd(SS)}, s{sT3} sc1")
        s("s_mov_b64 exec, -1"); yield

    def phi(self, R, n, creg, tmp):
        s = self.s
        eps = hex(f2u(1e-6*1.4426950408889634))
        for b in range(0, n, 4):
            for i in range(4): s(f"v_mul_f32 v{R+b+i}, v{creg(b+i)}, v{R+b+i}"); yield
            for i in range(4): s(f"v_exp_f32 v{tmp+i}, v{R+b+i} clamp"); yield
            for i in range(4): s(f"v_max_f32 v{R+b+i}, {eps}, v{R+b+i}"); yield
            for i in range(4): s(f"v_fmac_f32 v{tmp+i}, s{sLN2}, v{R+b+i}"); yield
            for i in range(2): s(f"v_cvt_pk_bf16_f32 v{R+b//2+i}, v{tmp+2*i}, v{tmp+2*i+1}"); yield

    def kv_task(self):
        s = self.s; T = TMP
        yield Gate(lambda: self.prep_done)
        self.boost = True
        ad, ad2 = vG0, vG1
        for x in (f"s_add_u32 s{sT1}, s{sMW}, {XTRA}", f"v_and_b32 v{ad}, 31, v{vL}", f"v_lshlrev_b32 v{ad}, 2, v{ad}", f"v_add_u32 v{ad}, s{sT1}, v{ad}",
                  f"v_lshrrev_b32 v{ad2}, 5, v{vL}", f"v_lshlrev_b32 v{ad2}, 4, v{ad2}", f"v_add_u32 v{ad2}, s{sT1}, v{ad2}"): s(x); yield
        s(f"ds_write_b32 v{ad}, v{vC}"); yield
        s(f"ds_write_b32 v{ad}, v{vC+1} offset:128"); yield
        for t in range(2):
            for i in range(4): rd = s(f"ds_read_b128 {v(T+16*t+4*i,4)}, v{ad2} offset:{128*t+32*i}"); yield
        yield Gate(lambda: self.slotno >= self.prep_slot + 4)
        s.wait(lg=rd); yield
        tmp = CS
        for t in range(2):
            yield from self.phi(ACCA+16*t, 16, lambda i: T+16*t+i, tmp)
            Vr = ACCA+32+16*t
            for i in range(16): s(f"v_mul_f32 v{Vr+i}, v{T+16*t+i}, v{Vr+i}"); yield
            for i in range(8): s(f"v_cvt_pk_bf16_f32 v{Vr+i}, v{Vr+2*i}, v{Vr+2*i+1}"); yield
        D1, D2 = T, T+16
        first = True
        for t in range(2):
            for kk in range(2):
                pk = v(ACCA+16*t+4*kk, 4); vv = v(ACCA+32+16*t+4*kk, 4)
                s(f"{MF32} {v(D1,16)}, {pk}, {vv}, {'0' if first else v(D1,16)}"); yield
                s(f"{MF32} {v(D2,16)}, {pk}, {v(KF,4)}, {'0' if first else v(D2,16)}"); yield
                first = False
        for x in (f"v_add_u32 v{ad}, s{sT1}, v{vL16}", f"v_xor_b32 v{ad2}, 0x2000, v{vL16}", f"s_add_u32 s{sT2}, s{sMW}, 0", f"v_xor_b32 v{ad2}, s{sT2}, v{ad2}", f"v_add_u32 v{ad2}, {XTRA}, v{ad2}",
                  f"s_mov_b32 s{sMK}, 0xffff0000", f"s_mov_b32 s{sMK+1}, 0xffff0000"): s(x); yield
        self.kv_safe = True
        yield self.after_slots(3)
        for i in range(8): s(f"v_cndmask_b32 v{D1+i}, v{D1+i}, v{D2+i}, s[{sMK}:{sMK+1}]"); yield
        for i in range(8, 16): s(f"v_cndmask_b32 v{D1+i}, v{D2+i}, v{D1+i}, s[{sMK}:{sMK+1}]"); yield
        for i in range(4): w = s(f"ds_write_b128 v{ad}, {v(D1+4*i,4)} offset:{1024*i}"); yield
        yield self.after_slots(2)
        s.wait(lg=w)
        s("s_barrier"); yield
        for i in range(4): rd = s(f"ds_read_b128 {v(D2+4*i,4)}, v{ad2} offset:{1024*i}"); yield
        yield self.after_slots(3)
        s.wait(lg=rd); yield
        for i in range(16): s(f"v_add_f32 v{D1+i}, v{D1+i}, v{D2+i}"); yield
        for i in range(8): s(f"v_cvt_pk_bf16_f32 v{D2+i}, v{D1+2*i}, v{D1+2*i+1}"); yield
        s(f"buffer_store_dwordx4 {v(D2,4)}, v{vL16}, {srd(SS)}, s{sKV} offen sc1"); yield
        st = s(f"buffer_store_dwordx4 {v(D2+4,4)}, v{vL16}, {srd(SS)}, s{sEO} offen sc1"); yield
        self.boost = False
        yield self.after_slots(OPT.flag_delay)
        s(f"v_mov_b32 v{D1}, s{sTAG}"); yield
        s(f"v_mov_b32 v{D1+1}, s{sEP}"); yield
        s.wait(vm=st)
        s("s_mov_b64 exec, 1")
        s(f"buffer_store_dwordx2 {v(D1,2)}, off, {srd(SS)}, s{sKF} sc1")
        s("s_mov_b64 exec, -1"); yield

    def kvreg(self, r): return (ACCA+32+4*r) if r < 8 else (TMP+4*(r-8))
    def kvload_task(self):
        s = self.s
        ad = vG0
        s(f"v_and_b32 v{ad}, 15, v{vL}"); yield
        s(f"v_lshlrev_b32 v{ad}, 3, v{ad}"); yield
        yield self.after_slots(OPT.kv_poll_at)
        txt = f"buffer_load_dwordx2 {v(ST+2,2)}, v{ad}, {srd(SS)}, s{sKF} offen sc1"
        ld = s(txt); yield
        yield self.after_slots(OPT.kv_poll_wait)
        s.wait(vm=ld); yield
        yield from self.check([(ST+2, f"s{sTAG}"), (ST+3, f"s{sEP}")], [txt], "kvf")
        for r in range(16):
            if r and r % 4 == 0: s(f"s_add_u32 s{sKV}, s{sKV}, 4096"); yield
            self.kvld.append(s(f"buffer_load_dwordx4 {v(self.kvreg(r),4)}, v{vL16}, {srd(SS)}, s{sKV} offen offset:{(r%4)*1024} sc1")); yield
            yield self.after_slots(1)

    def reads_for(self, G, typ):
        st, q = G//4, G % 4
        b = WB + 8*(G % 4)
        o = []
        if st < 16:
            w0 = [f"ds_read_b64_tr_b16 {v(b,2)}, v{WA} offset:{q*4096}", f"ds_read_b64_tr_b16 {v(b+2,2)}, v{WA} offset:{q*4096+512}"]
            w1 = [f"ds_read_b64_tr_b16 {v(b+4,2)}, v{WA+1} offset:{q*4096}", f"ds_read_b64_tr_b16 {v(b+6,2)}, v{WA+1} offset:{q*4096+512}"]
            if st < 8:
                o = [f"ds_read_b128 {a((2*G)*4,4)}, v{XA+q}"] + w0 + [f"ds_read_b128 {a((2*G+1)*4,4)}, v{XA+q} offset:4096"] + w1
            else: o = w0 + w1
        else:
            d, e = (1024, 256) if typ == "H" else (2048, 512)
            for sb in range(2):
                o += [f"ds_read_b64_tr_b16 {v(b+4*sb,2)}, v{WA} offset:{q*4096+sb*d}", f"ds_read_b64_tr_b16 {v(b+4*sb+2,2)}, v{WA} offset:{q*4096+sb*d+e}"]
        return o
    def mfmas_for(self, G, typ):
        b = WB + 8*(G % 4); o = []
        if G < 64:
            base = ACCA if G < 32 else ACCB; ks = G % 32
            for u in range(2):
                for t in range(2):
                    ac = v(base+32*u+16*t, 16); W_, X_ = v(b+4*u, 4), a((2*ks+t)*4, 4)
                    if typ == "H" and G < 32: W_, X_ = X_, W_
                    o.append(f"{MF32} {ac}, {W_}, {X_}, {'0' if ks == 0 else ac}")
        else:
            for sb in range(2):
                ks = 2*(G-64)+sb
                for t in range(2):
                    ac = v(ACCA+16*t, 16)
                    o.append(f"{MF32} {ac}, {v(b+4*sb,4)}, {a((2*ks+t)*4,4)}, {'0' if ks == 0 else ac}")
        return o
    def items_of(self, st):
        if st < 8: return [("x", st), ("w1", st)]
        if st < 16: return [("w2p", st)]
        if st < 20: return [("w3", st)]
        return []
    def barrier(self, n, typ):
        s = self.s
        its = self.items_of(n)
        for it in its: self.dma_step(force_item=it)
        vm = max((self.last_of[it] for it in its), key=lambda i: i.vmseq) if its else None
        lg = self.pend_w; self.pend_w = None
        if OPT.exp == "nowait" and 1 <= n <= 8: vm = None
        if vm is not None or lg is not None: s.wait(vm=vm, lg=lg)
        s("s_barrier"); self.nbar += 1
        for it in self.items_of(n-2) if n >= 2 else []: self.free.append(self.slot_of[it])

    def addr_update(self, txt, Gr, typ):
        s = self.s
        st, q = Gr//4, Gr % 4
        n = st + 1
        if n >= 20: return
        its = self.items_of(n)
        def need(it):
            if it not in self.slot_of:
                while it not in self.slot_of: self.dma_step(force_item=it)
            return self.slot_of[it]
        if "b128" in txt and "offset:4096" in txt and n < 8:
            d = ((need(its[0]) - self.slot_of[("x", st)])*SLOT) & 0xffffffff
            if d: s(f"v_add_u32 v{XA+q}, {hex(d)}, v{XA+q}")
        if q == 3 and "tr" in txt:
            rl = self.reads_for(Gr, typ)
            for r in range(2):
                uses = [x for x in rl if f", v{WA+r} " in x]
                if uses and uses[-1] == txt:
                    base = need(its[-1])*SLOT
                    if n == 16 or (n == 8 and typ == "H"):
                        assert self.pat_done == n
                        if n == 8 or r == 0: s(f"v_add_u32 v{WA+r}, {hex(base)}, v{(TMP+30 if n == 8 else vQ0)+r}")
                    else:
                        d = (base - self.slot_of[self.items_of(st)[-1]]*SLOT) & 0xffffffff
                        if d: s(f"v_add_u32 v{WA+r}, {hex(d)}, v{WA+r}")
    def pat_task(self, n, typ):
        if n == 16: yield Gate(lambda: self.prep_done)
        for x in self.rdpattern("glu" if n == 8 else ("half" if typ == "H" else "q"), TMP+30 if n == 8 else vQ0): self.s(x); yield
        self.pat_done = n

    def phase1(self, typ):
        s = self.s
        self.typ = typ
        self.tasks = []; self.free = list(range(1, NSLOT)); self.slot_of = {("x", 0): 0}; self.last_of = {("x", 0): self.x0last}
        self.dma = self.dma_task(typ); self.dma_gate = None; self.credit = 0
        self.slotno = 0; self.nbar = 0; self.flush = False; self.pend_w = None
        self.gran_ready = False; self.cs_done = False; self.prep_done = False; self.kvld = []; self.kv_safe = False; self.debt = 0; self.boost = False; self.mcredit = 0; self.mainslot = 0; self.cur_item = ('x', 0); self.pat_done = 0; self.flagA_done = False; self.gran_issued = False; self.ta = 0; self.ta_seen = len(self.s.vmlog)
        for _ in self.late_setup(typ): pass
        for x in self.wpattern("kv" if typ == "H" else "glu"): s(x)
        if typ == "H":
            s(f"s_lshl_b32 s{sOW}, s{sJ}, 7\ns_mul_i32 s{sT3}, s{sW}, {16*3072}\ns_add_u32 s{sOW}, s{sOW}, s{sT3}\ns_add_u32 s{sOW}, s{sOW}, 1024")
        else:
            s(f"s_mul_i32 s{sOW}, s{sJ}, 384\ns_mul_i32 s{sT3}, s{sW}, {16*3584}\ns_add_u32 s{sOW}, s{sOW}, s{sT3}")
        self.dma_step(force_item=("w1", 0))
        T = vBT
        s(f"v_and_b32 v{XA}, 31, v{vL}\ns_lshl_b32 s{sT3}, s{sTG}, 6\nv_add_u32 v{XA}, s{sT3}, v{XA}\nv_lshlrev_b32 v{XA}, 7, v{XA}")
        s(f"v_lshrrev_b32 v{T}, 5, v{vL}\nv_bfe_u32 v{XA+1}, v{vL}, 1, 3\nv_xor_b32 v{T}, v{T}, v{XA+1}\nv_lshl_add_u32 v{XA}, v{T}, 4, v{XA}")
        for q in (1, 2, 3): s(f"v_xor_b32 v{XA+q}, {32*q}, v{XA}")
        for x in self.rdpattern("kv" if typ == "H" else "glu"): s(x)
        for r in range(2): s(f"v_add_u32 v{WA+r}, {SLOT*self.slot_of[('w1', 0)]}, v{WA+r}")
        self.stats_compute()
        self.dma_step(force_item=("x", 1))
        self.colsum_pre()
        self.dma_step(force_item=("w1", 1))
        for it in [("x", 2), ("w1", 2)][:OPT.pre_items]: self.dma_step(force_item=it)
        self.barrier(0, typ)
        self.stamp(3)
        csrd = s(f"ds_read_b128 {v(TMP+4,4)}, v{TMP+1}")
        rdl = {}
        for G in (0, 1):
            for x in self.reads_for(G, typ): rdl[G] = s(x); self.addr_update(x, G, typ)
        self.ta_seen = len(s.vmlog); self.ta = OPT.ta_init
        self.add_task(self.colsum_task(csrd))
        if typ == "H": self.add_task(self.pat_task(8, typ))
        for G in range(80):
            p = 1 if G < 32 else (2 if G < 64 else 3)
            if G in (32, 64): self.log.append(f"|G{G}@{self.slotno}|")
            if G == 32:
                assert not self.tasks, "P1 tasks unfinished"
                self.stamp(4)
                self.add_task(self.prep_task(typ))
                if typ == "Q":
                    def epA():
                        yield Gate(lambda: self.prep_done and self.slotno >= self.prep_slot + 3)
                        yield from self.glu_pass(ACCA, 12, 0)
                    self.add_task(epA())
                else: self.add_task(self.kv_task())
                self.add_task(self.pat_task(16, typ))
            if G == 64:
                assert (not self.tasks) or (self.kv_safe and len(self.tasks) == 1), "P2 tasks unfinished"
                self.stamp(5)
                self.add_task(self.corr3_task())
                if typ == "Q": self.add_task(self.kvload_task())
                def epB():
                    yield self.after_slots(3)
                    yield from self.glu_pass(ACCB, 12, 8 if typ == "H" else 4)
                    yield from self.flag(FLAGA, OPT.flag_delay)
                    self.flagA_done = True
                self.add_task(epB())
            s.wait(lg=rdl[G])
            nxt = self.reads_for(G+2, typ) if G+2 < 80 else []
            mf = self.mfmas_for(G, typ)
            for i, m in enumerate(mf):
                s(m); self.slotno += 1; self.mainslot += 1
                u0 = s.units - (1 if i == 3 else 0)
                if G % 4 == 2 and i == 0: self.barrier(G//4+1, typ)
                if G == 79 and i == 0: self.barrier(21, typ)
                lo, hi = (i*len(nxt)+3)//4, ((i+1)*len(nxt)+3)//4
                for x in nxt[lo:hi]: rdl[G+2] = s(x); self.addr_update(x, G+2, typ)
                self.fill(p, u0)
        self.stamp(6)
        self.log.append(f"|end@{self.slotno}|")

    def move_task(self):
        s = self.s
        for x in self.rdpattern("w2"): s(x); yield
        base = 0; prev = None
        for c in range(19):
            yield Gate(lambda: ("v2", c) in self.last_of and getattr(self.last_of[("v2", c)], "land", 1e9) <= self.slotno)
            slot = self.slot_of[("v2", c)]
            d = (slot*SLOT - base) & 0xffffffff; base = slot*SLOT
            if d:
                for r in range(2): s(f"v_add_u32 v{WA+r}, {hex(d)}, v{WA+r}"); yield
            s.wait(vm=self.last_of[("v2", c)]); yield
            for sb in range(2):
                n = 2*c+sb
                for c2 in range(2):
                    for hf in range(2):
                        dst = a(8*n+4*c2+2*hf, 2) if n < 32 else v(W2B+8*(n-32)+4*c2+2*hf, 2)
                        if n >= 32 and not self.tail_done: yield Gate(lambda: self.tail_done)
                        rd = s(f"ds_read_b64_tr_b16 {dst}, v{WA+c2} offset:{sb*2048+hf*1024}"); yield
            if prev is not None:
                s.wait(lg=prev[1]); self.free.append(prev[0]); yield
            prev = (slot, rd)
        self.last_move = rd
        self.moves_done = True

    def tailH(self):
        s = self.s
        for x in (f"s_lshl_b32 s{sT1}, s{sJ}, 1", f"s_add_u32 s{sT1}, s{sT1}, s{sCH}", f"s_add_u32 s{sT1}, s{sT1}, 96", f"s_lshl_b32 s{sT1}, s{sT1}, 11", f"s_add_u32 s{sT1}, s{sT1}, s{sOH}"): s(x); yield
        for t in range(2): yield from self.glu_ep(ACCA+16*t, t, sT1, t*1024)
        self.tail_done = True
        yield from self.flag(FLAGB, OPT.tail_flag_delay)
        self.flagB_done = True

    def tailQ(self):
        s = self.s
        SUM = WB; tmp = WB+16; KA, KB = WB+20, WB+24
        ph = [self.phi(ACCA+16*t, 16, lambda i, t=t: vC+t, tmp) for t in range(2)]
        def allphi():
            for g in ph: yield from g
        ag = allphi()
        yield Gate(lambda: len(self.kvld) == 16)
        for r in range(16):
            for _ in range(9):
                try: next(ag); yield
                except StopIteration: pass
            s.wait(vm=self.kvld[r])
            s(f"{MF32} {v(SUM,16)}, {v(KF,4)}, {v(self.kvreg(r),4)}, {'0' if r == 0 else v(SUM,16)}"); yield
        for _ in ag: yield
        ad, ad2 = vG0, vG1
        for x in (f"s_add_u32 s{sT1}, s{sMW}, {XTRA}", f"v_add_u32 v{ad}, s{sT1}, v{vL16}", f"s_lshl_b32 s{sT1}, s{sCH}, 12", f"s_add_u32 s{sT1}, s{sT1}, {XTRA}", f"v_add_u32 v{ad2}, s{sT1}, v{vL16}",
                  f"s_lshl_b32 s{sT1}, s{sJ}, 1", f"s_add_u32 s{sT1}, s{sT1}, s{sCH}", f"s_lshl_b32 s{sT1}, s{sT1}, 12", f"s_add_u32 s{sT1}, s{sT1}, {112*2048}", f"s_add_u32 s{sT1}, s{sT1}, s{sOH}",
                  f"v_mov_b32 v{tmp}, s{sEP}"): s(x); yield
        for i in range(4): s(f"v_cvt_pk_bf16_f32 v{SUM+i}, v{SUM+2*i}, v{SUM+2*i+1}"); yield
        w = s(f"ds_write_b128 v{ad}, {v(SUM,4)}")
        s.wait(lg=w)
        s("s_barrier")
        s(f"ds_read_b128 {v(KA,4)}, v{ad2}")
        rd = s(f"ds_read_b128 {v(KB,4)}, v{ad2} offset:8192")
        s("s_mov_b64 exec, 1")
        s(f"buffer_store_dword v{tmp}, off, {srd(SS)}, s{sEO} sc1")
        s("s_mov_b64 exec, -1"); yield
        s.wait(lg=rd)
        for t in range(2):
            for hd in range(2):
                s(f"{MF32} {v(ACCB+32*t+16*hd,16)}, {v(KA+4*hd,4)}, {v(ACCA+16*t+4*hd,4)}, 0"); yield
        for t in range(2):
            for hd in range(2):
                D = ACCB+32*t+16*hd; num, den = (D, D+8) if hd == 0 else (D+8, D)
                s(f"v_add_f32 v{den}, {hex(f2u(1e-6))}, v{den}"); yield
                s(f"v_rcp_f32 v{den}, v{den}"); yield
                s(f"v_mul_f32 v{den}, s{sLN2}, v{den}"); yield
                for i in range(8): s(f"v_mul_f32 v{num+i}, v{den}, v{num+i}"); yield
                for i in range(4): s(f"v_cvt_pk_bf16_f32 v{den+4+i}, v{num+2*i}, v{num+2*i+1}"); yield
                self.last_store = s(f"buffer_store_dwordx4 {v(den+4,4)}, v{vL16}, {srd(SH)}, s{sT1} offen offset:{hd*2048+t*1024} sc1"); yield
        self.tail_done = True
        yield from self.flag(FLAGB, OPT.tail_flag_delay)
        self.flagB_done = True

    def pollA_task(self):
        s = self.s
        yield Gate(lambda: self.tail_done and ("v2", OPT.pollA_chunk) in self.last_of)
        for x in (f"s_cmp_eq_u32 s{sW}, 0", f"s_cselect_b32 s{sT2}, 15, 31", f"v_and_b32 v{vQ0}, s{sT2}, v{vL}", f"v_lshlrev_b32 v{vQ0}, 3, v{vQ0}",
                  f"v_and_b32 v{vQ1}, 15, v{vL}", f"v_lshlrev_b32 v{vQ1}, 3, v{vQ1}"): s(x)
        yield
        self.pollA_txt = f"buffer_load_dwordx2 {v(MF,2)}, v{vQ0}, {srd(SS)}, s{sFA} offen sc1"
        self.pollA = s(self.pollA_txt); yield
        yield Gate(lambda: self.dma is None and self.flagB_done and self.flagA_done and getattr(self.pollA, "land", 1e9) <= self.slotno)
        self.stamp(7)
        s.wait(vm=self.pollA)
        for _ in self.check([(MF, f"s{sTAG}"), (MF+1, f"s{sEP}")], [self.pollA_txt], "pa" + self.typ): pass
        self.stamp(8)
        self.nvm_h0 = s.nvm
        for n in range(NB-1):
            for _ in self.hissue(n): yield

    def tail(self, typ):
        s = self.s
        self.flush = False; self.tail_done = False; self.moves_done = False; self.flagB_done = False; self.loads = {}
        left = self.tasks; self.tasks = []
        main = {"gen": self.tailH() if typ == "H" else self.tailQ(), "gate": None}
        mv = {"gen": self.move_task(), "gate": None}
        pl = {"gen": self.pollA_task(), "gate": None}
        pri = left + [main]; low = [mv, pl]
        t0 = self.slotno; u0 = s.units; self.extra = 0.0
        def now(): return t0 + (s.units - u0)/8.0 + self.extra
        def sync():
            self.slotno = now(); self.ta_update()
        def step(tl, n):
            self.tasks = [t for t in tl]
            c0 = s.count
            while s.count - c0 < n and self.tasks:
                c1 = s.count; sn = self.slotno
                self.run_tasks(0.1)
                if s.count > c1 and s.hist[-1].kind == "mfma": self.extra += 0.85
                sync()
                if s.count == c1 and all(t["gate"] is not None and not t["gate"].fn() for t in self.tasks): break
            return self.tasks
        idle = 0
        while pri or low or self.dma is not None:
            c0 = s.count
            sync()
            if self.ta - self.slotno <= OPT.tail_ahead: self.dma_step(max_d=1); sync()
            low = step(low, OPT.tail_low)
            pri = step(pri, OPT.tail_pri)
            if s.count == c0:
                self.extra += 0.5; idle += 1
                assert idle < 2000, "tail deadlock"
        self.log.append(f"|tailend@{now():.0f} idle {idle/2}|")
        assert s.nvm - self.nvm_h0 == 2*(NB-1)
        s.wait(lg=0)

    def hissue(self, n):
        s = self.s
        if n >= 38: return
        if n < 32 and n % 2 == 0:
            s(f"s_lshl_b32 s{sDT}, s{sR3}, 12\ns_add_u32 s{sDT}, s{sDT}, s{sHA}\ns_add_u32 s{sR3}, s{sR3}, 1\ns_and_b32 s{sR3}, s{sR3}, 15")
        if n == 37: so, imm = sHB6, 0
        elif n >= 32: so, imm = sHB, (n % 2)*2048
        else: so, imm = sDT, (n % 2)*2048
        s(f"buffer_load_dwordx4 {v(hb(n),4)}, v{vL16}, {srd(SH)}, s{so} offen offset:{imm} sc1"); yield
        self.loads[n] = s(f"buffer_load_dwordx4 {v(hb(n)+4,4)}, v{vL16}, {srd(SH)}, s{so} offen offset:{imm+1024} sc1")
        if n % 2 == 1 and n >= 32: s(f"s_add_u32 s{sHB}, s{sHB}, 4096")
        yield

    def phase2(self):
        s = self.s
        ACC = ACCA
        loads = self.loads; issue = self.hissue
        XR = TMP
        T = vBT
        s(f"v_lshrrev_b32 v{T}, 3, v{vL}\nv_and_b32 v{vSV}, 7, v{vL}\nv_lshlrev_b32 v{vSV}, 4, v{vSV}\nv_lshl_add_u32 v{vSV}, v{T}, 10, v{vSV}")
        s(f"s_lshl_b32 s{sT1}, s{sTB}, 2\ns_add_u32 s{sT1}, s{sT1}, s{sW}\ns_lshl_b32 s{sT1}, s{sT1}, 14\ns_lshl_b32 s{sT2}, s{sCT}, 7\ns_add_u32 s{sT1}, s{sT1}, s{sT2}\ns_add_u32 s{sT2}, s{sT1}, 8192")
        pollB_txt = f"buffer_load_dwordx2 {v(MF,2)}, v{vQ1}, {srd(SS)}, s{sFB} offen sc1"
        RW, RR = VX, XA
        s(f"v_and_b32 v{RW}, 15, v{vL}\nv_lshlrev_b32 v{RW}, 8, v{RW}\nv_bfe_u32 v{T}, v{vL}, 4, 1\nv_lshl_add_u32 v{RW}, v{T}, 14, v{RW}")
        s(f"v_lshrrev_b32 v{T}, 5, v{vL}\nv_xor_b32 v{T}, v{T}, v{vL}\nv_and_b32 v{T}, 7, v{T}\nv_lshl_add_u32 v{RW}, v{T}, 4, v{RW}\nv_add_u32 v{RW}, s{sMW}, v{RW}")
        for i in (1, 2, 3): s(f"v_xor_b32 v{RW+i}, {32*i}, v{RW}")
        s(f"v_lshrrev_b32 v{T}, 3, v{vL}\nv_lshlrev_b32 v{RR}, 8, v{T}\nv_and_b32 v{RR+1}, 7, v{vL}\nv_lshlrev_b32 v{RR+1}, 1, v{RR+1}\nv_xor_b32 v{T}, v{T}, v{RR+1}")
        s(f"v_lshl_add_u32 v{RR}, v{T}, 4, v{RR}\ns_lshl_b32 s{sT3}, s{sW}, 14\nv_add_u32 v{RR}, s{sT3}, v{RR}\nv_xor_b32 v{RR+1}, 16, v{RR}")
        for n in range(38):
            if n == 32:
                s(f"s_cmp_eq_u32 s{sW}, 0\ns_cbranch_scc1 L_red")
            s.wait(vm=loads[n])
            ig = issue(n+NB-1)
            for c2 in range(2):
                for t in range(2):
                    ac = v(ACC+32*c2+16*t, 16)
                    W_ = a(8*n+4*c2, 4) if n < 32 else v(W2B+8*(n-32)+4*c2, 4)
                    s(f"{MF32} {ac}, {W_}, {v(hb(n)+4*t,4)}, {'0' if n == 0 else ac}")
                    if c2 == 0 and t == 0 and n + NB - 1 == 32:
                        s.wait(vm=pb)
                        for _ in self.check([(MF, f"s{sTAG}"), (MF+1, f"s{sEP}")], [pollB_txt], "pb"): pass
                    if c2 == 0: next(ig, None)
                    if c2 == 1 and t == 0:
                        if n == OPT.pollB_at: pb = s(pollB_txt)
                        if n == 4:
                            s(f"buffer_load_dwordx4 {v(XR,4)}, v{vSV}, {srd(SX)}, s{sT1} offen")
                            xl = s(f"buffer_load_dwordx4 {v(XR+4,4)}, v{vSV}, {srd(SX)}, s{sT2} offen")
        s.label("L_red")
        self.stamp(9)
        for c2 in range(2):
            for t in range(2):
                for i in range(4):
                    w = s(f"ds_write_b128 v{RW+i}, {v(ACC+32*c2+16*t+4*i,4)} offset:{t*32768+c2*128}")
        s.wait(lg=w)
        s("s_barrier")
        P = HB
        rds = {}
        for n in range(2):
            for wp in (1, 2, 3, 0):
                for h in range(2): rds[(n, wp)] = s(f"ds_read_b128 {v(P+32*n+8*wp+4*h,4)}, v{RR+h} offset:{wp*4096+n*2048}")
        s("s_waitcnt vmcnt(0)")
        s(f"s_mov_b32 s{sT3}, {hex(LOG2E | 0x80000000)}")
        for n in range(2):
            B = P+32*n
            s.wait(lg=rds[(n, 3)])
            for i in range(0, 8, 2): s(f"v_pk_add_f32 {v(B+8+i,2)}, {v(B+8+i,2)}, {v(B+16+i,2)}")
            for i in range(0, 8, 2): s(f"v_pk_add_f32 {v(B+8+i,2)}, {v(B+8+i,2)}, {v(B+24+i,2)}")
            for i in range(8): s(f"v_mul_f32 v{B+16+i}, s{sT3}, v{B+8+i}")
            for i in range(8): s(f"v_exp_f32 v{B+16+i}, v{B+16+i}")
            s.wait(lg=rds[(n, 0)])
            for i in range(0, 8, 2): s(f"v_pk_mul_f32 {v(B+i,2)}, {v(B+i,2)}, {v(B+8+i,2)}")
            for i in range(8): s(f"v_add_f32 v{B+16+i}, 1.0, v{B+16+i}")
            for i in range(8): s(f"v_rcp_f32 v{B+16+i}, v{B+16+i}")
            for i in range(4):
                s(f"v_lshlrev_b32 v{B+24+2*i}, 16, v{XR+4*n+i}\nv_and_b32 v{B+25+2*i}, 0xffff0000, v{XR+4*n+i}")
            for i in range(0, 8, 2): s(f"v_pk_fma_f32 {v(B+i,2)}, {v(B+i,2)}, {v(B+16+i,2)}, {v(B+24+i,2)}")
            for i in range(4): s(f"v_cvt_pk_bf16_f32 v{B+8+i}, v{B+2*i}, v{B+2*i+1}")
            s(f"buffer_store_dwordx4 {v(B+8,4)}, v{vSV}, {srd(SO)}, s{sT1 if n == 0 else sT2} offen")
        self.stamp(10)
        self.stamp_flush()
        if OPT.diag == "fixed":
            s.label("L_spin")
            s(f"s_memrealtime s[98:99]\ns_waitcnt lgkmcnt(0)\ns_sub_u32 s98, s98, s100\ns_cmp_lt_u32 s98, {OPT.diag_n}\ns_cbranch_scc1 L_spin")
        if OPT.diag == "chase":
            s("s_cmp_lg_u32 s2, 0\ns_cbranch_scc1 L_exit")
            s("s_load_dwordx2 s[4:5], s[100:101], 24\ns_waitcnt lgkmcnt(0)")
            s("s_mov_b32 s8, s4\ns_mov_b32 s9, s5\ns_mov_b32 s10, 0x200000\ns_mov_b32 s11, 0x20000\ns_mov_b32 s12, 0\nv_mov_b32 v4, 0")
            s.label("L_chase")
            s(f"buffer_load_dword v5, v4, s[8:11], s12 offen\ns_waitcnt vmcnt(0)\ns_add_u32 s12, s12, 8320\ns_cmp_lt_u32 s12, {8320*OPT.diag_n}\ns_cbranch_scc1 L_chase")
        s.label("L_exit")
        s("s_endpgm")

HB = ACCB
NB = 8
def hb(n): return HB + 8*(n % NB)
W2B = 72

def items_before_gran(g):
    return ("w2p", 8)

def build(opt_over=None):
    o = OPT
    o.gran_after = 8; o.cs_delay = 10; o.flag_delay = 16; o.tail_flag_delay = 10; o.kv_poll_at = 20; o.kv_poll_wait = 20
    o.pollA_chunk = 16; o.pollB_at = 16; o.tail_pri = 4; o.tail_low = 3; o.join_drain = True; o.pf_lines = 3; o.ta_line = 0.26; o.ta_ahead = 0.6; o.crit = 14; o.touch = {1: 3, 2: 2, 3: 2, 4: 1}; o.tlb = 0; o.lat = 16; o.tail_ahead = 4; o.gran_wait = 0; o.ta_init = -6; o.dma_first = {1: 1, 2: 1, 3: 1, 11: 1, 12: 1, 13: 1}; o.pre_items = 1; o.rot1 = 1; o.rot2 = 0
    o.c_vm4 = 2; o.c_vm2 = 2; o.c_dsw = 3; o.c_ds128 = 1; o.c_s = 0.6; o.c_bar = 3; o.lead = 28; o.opt_rate = {1: 0.7, 2: 0.45, 3: 0.45}; o.min_rate = {1: 0, 2: 0.0, 3: 0.3}; o.boost = 1; o.early_slots = 12; o.early_rate = 1.0
    o.budget = {1: 6, 2: 6, 3: 6}; o.dma_rate = {1: 0.56, 2: 0.45, 3: 0.5}
    for k, val in (opt_over or {}).items(): setattr(o, k, {int(a): b for a, b in val.items()} if isinstance(val, dict) else val)
    g = Gen(); s = g.s; s.costfn = cost
    g.prologue()
    nvm0, hist0 = s.nvm, list(s.hist)
    g.phase1("H"); g.tail("H")
    cH = s.count
    s("s_branch L_p2")
    s.label("L_typeQ")
    s.nvm = nvm0; s.hist = hist0
    g.phase1("Q"); g.tail("Q")
    s.label("L_p2")
    s("s_nop 7")
    g.phase2()
    if OPT.exp in ("nodma", "hot", "nox", "nobar"):
        out = []; nm = 0
        for l in s.out:
            if "L_typeQ:" in l: nm = 0
            if "v_mfma" in l: nm += 1
            if 0 < nm < 128:
                if OPT.exp == "nodma" and l.endswith(" lds"): l = "    s_nop 0"
                if OPT.exp == "hot" and l.endswith(" lds"): l = l.replace("s69", "s71").replace("s70", "s71")
                if OPT.exp == "nox" and "ds_read_b128 a" in l: l = "    s_nop 0"
                if OPT.exp == "nobar" and "s_barrier" in l: l = "    s_nop 0"
            out.append(l)
        s.out = out
    body = s.text() + "".join(g.tailblocks) + "L_codeend:\n"
    head = f"""; fused LayerNorm + linear attention + GLU block, one persistent launch (generated by gen/kern.py)
; @launch grid=(256,1,1) block=(256,1,1) lds={LDS_BYTES}
.amdgcn_target "amdgcn-amd-amdhsa--gfx950"
.text
.globl {NAME}
.p2align 8
.type {NAME},@function
{NAME}:
"""
    foot = f""".section .rodata,"a"
.p2align 6
.amdhsa_kernel {NAME}
  .amdhsa_next_free_vgpr 512
  .amdhsa_next_free_sgpr 102
  .amdhsa_accum_offset 256
  .amdhsa_group_segment_fixed_size 0
  .amdhsa_kernarg_size 80
  .amdhsa_user_sgpr_count 2
  .amdhsa_user_sgpr_kernarg_segment_ptr 1
  .amdhsa_system_sgpr_workgroup_id_x 1
  .amdhsa_float_denorm_mode_32 3
.end_amdhsa_kernel
"""
    print(" ".join(g.log), file=sys.stderr)
    print(f"instrs {s.count} (H path {cH}) nop states {s.nops}", file=sys.stderr)
    return head + body + foot

if __name__ == "__main__":
    import json
    over = json.loads(sys.argv[2]) if len(sys.argv) > 2 else {}
    open(sys.argv[1], "w").write(build(over))
```

```python
import sys, struct, json
from emit import Stream

NAME = "recurrent_scan__linear_attn_block__glu_gated_glu__prompt_kernel"
EPOCH, STATS, FLAGA, FLAGB, KVFLAG = 0, 0x1000, 0x5000, 0x7000, 0x9000
CPFLAG, COLSUM, KV, STAMP, W2C, SMALL = 0xA000, 0x10000, 0x40000, 0xC0000, 0x100000, 0x148000
KVS = 640
H_OFF, TBB = 0x200000, 144*2048
H_BYTES = 32*TBB
OOB = 0x40000000
NSLOT, SLOT, XTRA = 9, 16384, 147456
LDS_BYTES = 163840
sBT, sROT, sDT, sMK, sP, sSH = 0, 1, 3, 10, 20, 21
sCPX, sCPO, sC2, sWR, sHR, sO16, sO18, sH36, sW0X = 4, 6, 7, 8, 9, 12, 13, 14, 16
SX, SQ, SG, SU, SW, SO, SS, SH, SC = 24, 28, 32, 36, 40, 44, 48, 52, 56
sW, sTG, sCH, sRB, sJ, sTAG, sEP, sTB, sCT = 60, 61, 62, 63, 64, 65, 66, 67, 68
sOX, sOW, sMW, sLN2, sOH, sOF, sT0, sT1, sT2, sT3 = 69, 70, 71, 72, 73, 74, 75, 76, 77, 78
sCS = 79
sPO, sPP, sPS = 84, 85, 86
sOW2, sHA, sHB, sFA, sKV, sKF, sEO, sCNT, sE1, sE2, sR4 = 87, 88, 89, 90, 91, 92, 93, 94, 95, 96, 97
sST = 98
def srd(n): return f"s[{n}:{n+3}]"
vBT, vL, vL16, vDT = 0, 1, 2, 3
VX, VW, XA, WA = 4, 8, 12, 16
vCK = 15
vSV, vG0, vG1, vQ0, vQ1, vE3 = 18, 19, 20, 21, 22, 23
CS, ST, MF, vC, vD, KF, TMP, WB = 24, 44, 48, 56, 58, 60, 64, 96
vRG, vRS, vR2, vD2, vD3, vDW, vTR = 120, 121, 122, 123, 124, 125, 126
ACCA, ACCB = 128, 192
vLT, vPFD = 80, 255
HB, NB, W2B = ACCB, 8, 72
def hb(n): return HB + 8*(n % NB)
def v(b, n=1): return f"v{b}" if n == 1 else f"v[{b}:{b+n-1}]"
def a(b, n=1): return f"a{b}" if n == 1 else f"a[{b}:{b+n-1}]"
LOG2E = 0x3fb8aa3b; LN2 = 0x3f317218
def f2u(x): return struct.unpack("<I", struct.pack("<f", x))[0]
MF32 = "v_mfma_f32_32x32x16_bf16"

class Opt: pass
OPT = Opt()
DEFAULTS = dict(stamps=False, trace=False, spin=20000, code_pf=True, pf_lines=3, rot1=1, diag=None, diag_n=0,
    c_vm4=2, c_vm2=2, c_dsw=3, c_s=0.6, c_bar=5, budget={0: 6, 1: 6, 2: 6}, boost=1, lead=28, crit=14, ta_line=0.29, ta_ahead=0.6, ta_init=-6,
    lat=16, tail_ahead=4, tail_pri=6, tail_low=2, dma_first={0: 1, 1: 1, 2: 1, 10: 1, 11: 1, 12: 1}, pre_items=1,
    touch={1: 3, 2: 2, 3: 2, 4: 1}, gran_after=8, cs_delay=8, prep_at=124, flag_delay=14, tail_flag_delay=10, kv_poll_at=300, kv_poll_wait=16,
    poll_chunk=16, out_flag="nt", map2=0, rot2=1, slowfix=1, tail_ta=0.29, cp_poll_at=150, tail_mid=2, kv_ahead=3)

def cost(ins):
    k = ins.kind
    if k == "vmem": return OPT.c_vm4 if "x4" in ins.mn else OPT.c_vm2
    if k == "trans": return 2
    if k == "ds": return OPT.c_dsw if ins.mn.startswith("ds_write_b128") else 1
    if k == "nop": return ins.states
    if ins.mn == "s_barrier": return OPT.c_bar
    if k in ("salu", "ctl", "smem"): return OPT.c_s
    return 1

class Gate:
    def __init__(self, fn): self.fn = fn

PASSES = {
    "H": [("kv", 8, [[ACCA, ACCA+16], [ACCA+32, ACCA+48]], [0, 1], (128, 1024)),
          ("glu", 8, [[ACCB, ACCB+16], [ACCB+32, ACCB+48]], [2, 3], (384, 256)),
          ("half", 4, [[ACCA, ACCA+16]], [4], (64, 3072))],
    "Q": [("glu", 8, [[ACCA, ACCA+16], [ACCA+32, ACCA+48]], [0, 1], (384, 0)),
          ("q", 4, [[ACCB, ACCB+16]], [4], (128, 0)),
          ("glu", 8, [[ACCB+32, ACCB+48], [ACCA, ACCA+16]], [2, 3], (384, 128))]}
PITCH = {"kv": 3072, "q": 3072, "glu": 3584, "half": 3584}

class Gen:
    STREG = [100, 98, 18, 20, 22, 40, 42, 4, 16, 80, 82]
    def __init__(self):
        self.s = Stream(); self.s.costfn = cost
        self.tailblocks = []; self.log = []; self.ntr = 0
    def stamp(self, i):
        if not OPT.stamps: return
        r = self.STREG[i]
        self.s(f"{'s_memtime' if OPT.stamps == 'cyc' else 's_memrealtime'} s[{r}:{r+1}]")
    def tr(self):
        if not OPT.trace: return
        k = self.ntr; self.ntr += 1
        if 0 < k <= 128: self.s(f"v_writelane_b32 v{vTR + (k-1)//64}, s98, {(k-1) % 64}")
        self.s("s_memtime s[98:99]")
    def stamp_flush(self):
        s = self.s
        if not (OPT.stamps or OPT.trace): return
        s("s_waitcnt lgkmcnt(0)")
        s(f"s_lshl_b32 s{sT0}, s2, 2\ns_add_u32 s{sT0}, s{sT0}, s{sW}\ns_lshl_b32 s{sT0}, s{sT0}, {9 if OPT.trace else 8}\ns_add_u32 s{sT0}, s{sT0}, {STAMP - (0x40000 if OPT.trace else 0)}")
        if OPT.trace:
            s(f"v_lshlrev_b32 v64, 2, v{vL}")
            s(f"buffer_store_dword v{vTR}, v64, {srd(SS)}, s{sT0} offen\nbuffer_store_dword v{vTR+1}, v64, {srd(SS)}, s{sT0} offen offset:256")
            return
        s("s_mov_b64 exec, 1")
        for i, r in enumerate(self.STREG):
            s(f"v_mov_b32 v{64+i}, s{r}\nbuffer_store_dword v{64+i}, off, {srd(SS)}, s{sT0} offset:{4*i}")
    def check(self, pairs, reloads, name, t=vCK):
        s = self.s
        seq = []
        for i, (r, e) in enumerate(pairs):
            seq.append(f"v_xor_b32 v{t}, {e}, v{r}" if i == 0 else f"v_bitop3_b32 v{t}, v{t}, v{r}, {e} bitop3:0xf6")
        lr, lb = f"L_retry_{name}", f"L_back_{name}"
        for x in seq:
            s(x); yield
        s(f"v_cmp_ne_u32 vcc, 0, v{t}")
        s(f"s_cbranch_vccnz {lr}")
        s.label(lb)
        b = Stream()
        b.label(lr)
        b(f"s_mov_b32 s{sCNT}, {OPT.spin}")
        b.label(lr + "_loop")
        b("s_nop 4")
        for x in reloads: b(x)
        b("s_waitcnt vmcnt(0)")
        for x in seq: b(x)
        b(f"v_cmp_ne_u32 vcc, 0, v{t}")
        b(f"s_cbranch_vccz {lb}")
        b(f"s_sub_u32 s{sCNT}, s{sCNT}, 1\ns_cmp_lg_u32 s{sCNT}, 0")
        b(f"s_cbranch_scc1 {lr}_loop")
        b(f"s_branch {lb}")
        self.tailblocks.append(b.text())
        yield

    def prologue(self):
        s = self.s; T = TMP
        s("s_cmp_ge_u32 s2, 256")
        s("s_cbranch_scc1 L_exit")
        if OPT.diag == "fixed": s("s_memrealtime s[100:101]")
        self.stamp(0)
        s("s_load_dwordx16 s[4:19], s[0:1], 0")
        s("s_load_dwordx2 s[22:23], s[0:1], 72")
        s(f"v_lshrrev_b32 v{vDT}, 6, v0\nv_and_b32 v{vL}, 63, v0\nv_readfirstlane_b32 s{sW}, v{vDT}")
        s(f"s_lshr_b32 s{sT0}, s2, 3")
        if OPT.code_pf:
            s(f"s_getpc_b64 s[{sST}:{sST+1}]")
            s(f"s_lshl_b32 s{sT1}, s{sT0}, 2\ns_add_u32 s{sT1}, s{sT1}, s{sW}\ns_mul_i32 s{sT1}, s{sT1}, {OPT.pf_lines*128}")
            s(f"v_min_u32 v{vDT}, {OPT.pf_lines-1}, v{vL}\nv_lshl_add_u32 v{vDT}, v{vDT}, 7, s{sT1}")
            s(f"v_min_u32 v{vDT}, L_codeend-{NAME}-256, v{vDT}")
            s(f"global_load_dword v{vPFD}, v{vDT}, s[{sST}:{sST+1}]")
        s(f"s_lshl_b32 s{sMW}, s{sW}, 12")
        s(f"s_and_b32 s{sRB}, s2, 1\ns_lshl_b32 s{sRB}, s{sRB}, 3\ns_and_b32 s{sT1}, s{sT0}, 7\ns_or_b32 s{sRB}, s{sRB}, s{sT1}")
        s(f"s_and_b32 s{sJ}, s2, 6\ns_bfe_u32 s{sT1}, s{sT0}, 0x10003\ns_or_b32 s{sJ}, s{sJ}, s{sT1}")
        if OPT.rot1: s(f"s_xor_b32 s{sE1}, s{sT1}, s{sT0}\ns_and_b32 s{sE1}, s{sE1}, 1")
        else: s(f"s_mov_b32 s{sE1}, 0")
        s(f"v_lshrrev_b32 v{T}, 3, v{vL}\nv_and_b32 v{T+1}, 7, v{vL}\nv_lshrrev_b32 v{T+2}, 4, v{vL}")
        s(f"v_xor_b32 v{T+3}, v{T+1}, v{T+2}\nv_lshlrev_b32 v{T+3}, 4, v{T+3}\nv_lshl_add_u32 v{VX}, v{T}, 10, v{T+3}")
        s(f"v_xor_b32 v{VX+1}, 64, v{VX}\nv_add_u32 v{VX+1}, 7168, v{VX+1}\nv_add_u32 v{VX+2}, {2*7168}, v{VX}\nv_add_u32 v{VX+3}, {2*7168}, v{VX+1}")
        s(f"v_lshrrev_b32 v{T+4}, 5, v{vL}\nv_and_b32 v{T+5}, 31, v{vL}\nv_lshlrev_b32 v{T+5}, 4, v{T+5}\nv_lshl_add_u32 v{T+5}, v{T+4}, 10, v{T+5}")
        s(f"s_lshr_b32 s{sT2}, s{sT0}, 4\ns_lshl_b32 s{sT2}, s{sT2}, 3\ns_add_u32 s{sT2}, s{sT2}, s{sJ}\ns_lshl_b32 s{sT2}, s{sT2}, 2\ns_add_u32 s{sT2}, s{sT2}, s{sW}\ns_lshl_b32 s{sT2}, s{sT2}, 1")
        s(f"s_lshl_b32 s{sT3}, s{sRB}, 7\ns_add_u32 s{sT2}, s{sT2}, s{sT3}\ns_lshl_b32 s{sOF}, s{sT2}, 10")
        s(f"s_lshl_b32 s{sOX}, s{sW}, 5\ns_add_u32 s{sOX}, s{sOX}, s{sT3}\ns_lshl_b32 s{sOX}, s{sOX}, 10\ns_lshl_b32 s{sT3}, s{sE1}, 9\ns_add_u32 s{sOX}, s{sOX}, s{sT3}")
        s(f"s_lshl_b32 s{sOW}, s{sJ}, 7\ns_add_u32 s{sT3}, s{sOW}, 1024\ns_mul_i32 s{sOW}, s{sOW}, 3")
        s(f"s_movk_i32 s{sP}, 3072\ns_mov_b32 s{SW+2}, 1572864")
        s(f"s_cmp_ge_u32 s{sT0}, 16\ns_cselect_b32 s{sP}, 3584, s{sP}\ns_cselect_b32 s{sSH}, 0, 1024\ns_cselect_b32 s{sOW}, s{sOW}, s{sT3}\ns_cselect_b32 s{SW+2}, 1835008, s{SW+2}")
        s(f"s_lshl_b32 s{sT3}, s{sE1}, 4\ns_add_u32 s{sT3}, s{sT3}, s{sW}\ns_lshl_b32 s{sT3}, s{sT3}, 4\ns_mul_i32 s{sT3}, s{sT3}, s{sP}\ns_add_u32 s{sOW}, s{sOW}, s{sT3}")
        s(f"v_and_b32 v{T+2}, 1, v{T+2}\nv_lshlrev_b32 v{T+2}, 2, v{T+2}\nv_xor_b32 v{T+2}, v{T+2}, v{T+1}\nv_lshlrev_b32 v{T+2}, 4, v{T+2}")
        s(f"v_mad_u32_u24 v{VW}, v{T}, s{sP}, v{T+2}\ns_lshl_b32 s{sT3}, s{sP}, 3\ns_sub_u32 s{sT3}, s{sT3}, 1024")
        s(f"v_add_u32 v{VW+1}, s{sT3}, v{VW}\nv_xor_b32 v{VW+2}, 32, v{VW}\nv_add_u32 v{VW+2}, s{sSH}, v{VW+2}\nv_add_u32 v{VW+3}, s{sT3}, v{VW+2}")
        s(f"s_mov_b32 s{SX+2}, 0x200000\ns_mov_b32 s{SX+3}, 0x20000\ns_mov_b32 s{SW+3}, 0x20000\ns_mov_b32 s{SH+2}, s{SW+2}\ns_mov_b32 s{SH+3}, 0x20000")
        s(f"s_mov_b32 m0, s{sMW}\ns_cmp_ge_u32 s{sT0}, 16")
        s("s_waitcnt lgkmcnt(0)")
        s(f"s_mov_b64 s[{SX}:{SX+1}], s[4:5]")
        self.ld_st = [s(f"buffer_load_dwordx4 {v(T+8,4)}, v{T+5}, {srd(SX)}, s{sOF} offen"),
                      s(f"buffer_load_dwordx4 {v(T+12,4)}, v{T+5}, {srd(SX)}, s{sOF} offen offset:512")]
        for n in range(4): self.x0last = s(f"buffer_load_dwordx4 v{VX+n}, {srd(SX)}, s{sOX} offen offset:{n*1024} lds")
        s(f"s_cselect_b64 s[{SW}:{SW+1}], s[12:13], s[6:7]\ns_cselect_b64 s[{SH}:{SH+1}], s[14:15], s[6:7]")
        s(f"s_add_u32 m0, s{sMW}, {SLOT}")
        s(f"s_load_dword s{sEP}, s[22:23], {EPOCH}")
        for n in range(4):
            if n == 2: s(f"s_add_u32 m0, s{sMW}, {SLOT+2048}\ns_add_u32 s{sOX}, s{sOX}, 128")
            self.w0last = s(f"buffer_load_dwordx4 v{VW+n}, {srd(SW if n < 2 else SH)}, s{sOW} offen offset:{(n&1)*1024} lds")
        self.stamp(1)
        s(f"s_lshl_b32 s{sT3}, s{sP}, 6\ns_add_u32 s{sOW}, s{sOW}, s{sT3}\ns_mov_b32 s{sROT}, s{sE1}")
        s(f"s_lshl_b32 s{sT2}, s{sT2}, 3\ns_add_u32 s{sDT}, s{sT2}, {STATS}")
        s(f"v_lshlrev_b32 v{vL16}, 4, v{vL}\ns_lshr_b32 s{sTG}, s{sW}, 1\ns_and_b32 s{sCH}, s{sW}, 1")
        self.piece()
        if OPT.slowfix:
            s(f"s_lshl_b32 s{sE2}, s{sW}, 8\ns_add_u32 s{sE2}, s{sE2}, s2\ns_lshr_b32 s{sR4}, s16, 7\ns_sub_u32 s{sR4}, 3, s{sR4}\ns_and_b32 s{sR4}, s{sR4}, 7")
            s(f"s_sub_u32 s{sT1}, s{sE2}, 224\ns_cmp_lt_u32 s{sE2}, 224\ns_cselect_b64 s[{SC}:{SC+1}], s[16:17], s[8:9]\ns_cselect_b32 s{sT1}, s{sE2}, s{sT1}\ns_mov_b32 s{SC+2}, 524288\ns_cselect_b32 s{SC+2}, 1835008, s{SC+2}")
            s(f"s_lshl_b32 s{sT1}, s{sT1}, 13\ns_lshl_b32 s{sT3}, s{sR4}, 7\ns_add_u32 s{sT1}, s{sT1}, s{sT3}\nv_lshl_add_u32 v{vDW}, v{TMP}, 10, v{TMP+2}")
            self.ld_cp = s(f"buffer_load_dwordx4 {v(TMP+20,4)}, v{vDW}, {srd(SC)}, s{sT1} offen")
        for n, p, size in ((SQ, 6, 1572864), (SG, 12, 1835008), (SU, 14, 1835008), (SS, 22, SMALL), (SO, 18, 0x200000)):
            s(f"s_mov_b64 s[{n}:{n+1}], s[{p}:{p+1}]\ns_mov_b32 s{n+2}, {size}\ns_mov_b32 s{n+3}, 0x20000")
        self.common_setup()
        s(f"s_cmp_ge_u32 s{sT0}, 16")
        s("s_cbranch_scc1 L_typeQ")

    def piece(self):
        s = self.s
        lc, A, B, Cc, Dd = sHB, sOW2, sFA, sHA, sPO
        s(f"s_and_b32 s{sT1}, s2, 1\ns_lshl_b32 s{sT1}, s{sT1}, 5\ns_add_u32 s{sT1}, s{sT1}, s{sT0}")
        s(f"s_mul_i32 s{lc}, s{sT1}, 43691\ns_lshr_b32 s{lc}, s{lc}, 17")
        s(f"s_mul_i32 s{sPS}, s{lc}, 3\ns_sub_u32 s{sT1}, s{sT1}, s{sPS}")
        s(f"s_lshr_b32 s{A}, s{lc}, 1\ns_add_u32 s{A}, s{A}, 1\ns_cmp_eq_u32 s{A}, 3\ns_cselect_b32 s{A}, 0, s{A}\ns_lshl_b32 s{A}, s{A}, 3")
        s(f"s_and_b32 s{B}, s2, 6\ns_add_u32 s{A}, s{A}, s{B}\ns_and_b32 s{Cc}, s{lc}, 1\ns_add_u32 s{A}, s{A}, s{Cc}")
        s(f"s_cmp_ge_u32 s{lc}, 13\ns_cselect_b32 s{Cc}, 13, 6\ns_cselect_b32 s{sPS}, 52, 24\ns_cselect_b64 s[{SC}:{SC+1}], s[14:15], s[12:13]\ns_sub_u32 s{Cc}, s{lc}, s{Cc}")
        s(f"s_mul_i32 s{Dd}, s{B}, 3\ns_add_u32 s{Dd}, s{Dd}, s{Cc}\ns_lshr_b32 s{B}, s{B}, 1\ns_add_u32 s{B}, s{B}, 24")
        s(f"s_cmp_eq_u32 s{Cc}, 6\ns_cselect_b32 s{B}, s{B}, s{Dd}\ns_add_u32 s{Cc}, s{sPS}, s{B}")
        s(f"s_cmp_lt_u32 s{lc}, 6\ns_mov_b32 s{SC+2}, 1835008\ns_cselect_b32 s{SC+2}, 1572864, s{SC+2}\ns_cselect_b64 s[{SC}:{SC+1}], s[6:7], s[{SC}:{SC+1}]")
        s(f"s_cselect_b32 s{Cc}, s{A}, s{Cc}\ns_cselect_b32 s{B}, s{A}, s{B}\ns_movk_i32 s{A}, 3584\ns_cselect_b32 s{A}, 3072, s{A}\ns_mov_b32 s{SC+3}, 0x20000")
        s(f"s_lshl_b32 s{sPP}, s{A}, 3")
        s(f"s_lshl_b32 s{Dd}, s{sT1}, 2\ns_add_u32 s{Dd}, s{Dd}, s{sW}\ns_mul_i32 s{Dd}, s{Dd}, 6\ns_mul_i32 s{sPO}, s{Dd}, s{sPP}")
        s(f"s_lshl_b32 s{B}, s{B}, 7\ns_add_u32 s{sPO}, s{sPO}, s{B}")
        s(f"s_lshl_b32 s{sPS}, s{Cc}, 11\ns_lshl_b32 s{sT1}, s{sT1}, 9\ns_add_u32 s{sPS}, s{sPS}, s{sT1}\ns_add_u32 s{sPS}, s{sPS}, {COLSUM}")
        s(f"s_cmp_lg_u32 s{sW}, 0\ns_cselect_b32 s{sPS}, {OOB}, s{sPS}")
        s(f"s_cmp_ge_u32 s{lc}, 20\ns_cselect_b32 s{sPS}, {OOB}, s{sPS}\ns_cselect_b32 s{sPO}, {OOB}, s{sPO}")
        s(f"v_lshlrev_b32 v{vSV}, 4, v{TMP+1}\nv_mad_u32_u24 v{vSV}, v{TMP}, s{A}, v{vSV}")
        self.ld_cs = []
        for n in range(6):
            self.ld_cs.append(s(f"buffer_load_dwordx4 {v(CS+4*n,4)}, v{vSV}, {srd(SC)}, s{sPO} offen"))
            if n < 5: s(f"s_add_u32 s{sPO}, s{sPO}, s{sPP}")

    def rdpattern(self, kind, D):
        T, U = vBT, vDT
        o = [f"v_bfe_u32 v{T}, v{vL}, 2, 2", f"v_lshrrev_b32 v{U}, 5, v{vL}", f"v_lshl_add_u32 v{T}, v{U}, {2 if kind == 'w2' else 3}, v{T}"]
        if kind == "half":
            o += [f"v_lshlrev_b32 v{D}, 6, v{T}", f"v_bfe_u32 v{T}, v{vL}, 4, 1", f"v_lshl_add_u32 v{D}, v{T}, 11, v{D}",
                  f"v_xor_b32 v{T}, s{sCH}, v{T}", f"v_lshl_add_u32 v{D}, v{T}, 5, v{D}"]
        else:
            o += [f"v_lshlrev_b32 v{D}, 7, v{T}", f"v_and_b32 v{T}, 2, v{T}", f"v_bfe_u32 v{U}, v{vL}, 4, 1", f"v_xor_b32 v{T}, v{T}, v{U}"]
            if kind == "glu": o += [f"v_lshl_add_u32 v{D}, v{U}, 11, v{D}"]
            if kind != "w2": o += [f"s_lshl_b32 s{sBT}, s{sCH}, 1", f"v_xor_b32 v{T}, s{sBT}, v{T}"]
            o += [f"v_lshl_add_u32 v{D}, v{T}, 5, v{D}"]
        o += [f"v_and_b32 v{T}, 3, v{vL}", f"v_lshl_add_u32 v{D}, v{T}, 3, v{D}"]
        if kind == "w2": o += [f"v_add_u32 v{D}, s{sMW}, v{D}"]
        return o

    def common_setup(self):
        s = self.s; T = vLT
        L = [f"s_cmp_eq_u32 s{sW}, 0", f"s_cselect_b64 s[{SW}:{SW+1}], s[8:9], s[16:17]", f"s_mov_b32 s{SW+2}, 1835008", f"s_cselect_b32 s{SW+2}, 524288, s{SW+2}",
             f"s_cselect_b32 s{sT2}, 1, s{sW}", f"s_cselect_b64 s[{sW0X}:{sW0X+1}], -1, 1", f"s_sub_u32 s{sT2}, s{sT2}, 1", f"s_mul_i32 s{sT2}, s{sT2}, 19",
             f"s_add_u32 s{SH}, s22, {H_OFF}", f"s_addc_u32 s{SH+1}, s23, 0", f"s_mov_b32 s{SH+2}, {H_BYTES}", f"s_mov_b32 s{sLN2}, {hex(LN2)}",
             *([f"s_and_b32 s{sTB}, s2, 7", f"s_lshl_b32 s{sTB}, s{sTB}, 2", f"s_and_b32 s{sT3}, s{sT0}, 3", f"s_or_b32 s{sTB}, s{sTB}, s{sT3}", f"s_lshr_b32 s{sCT}, s2, 5"] if OPT.map2 == 0 else
               [f"s_and_b32 s{sTB}, s2, 6", f"s_lshl_b32 s{sTB}, s{sTB}, 2", f"s_and_b32 s{sT3}, s{sT0}, 7", f"s_or_b32 s{sTB}, s{sTB}, s{sT3}",
                f"s_and_b32 s{sCT}, s2, 1", f"s_lshl_b32 s{sCT}, s{sCT}, 2", f"s_lshr_b32 s{sT3}, s{sT0}, 3", f"s_or_b32 s{sCT}, s{sCT}, s{sT3}"]),
             f"s_cmp_eq_u32 s{sW}, 3", f"s_cselect_b32 s{sT1}, 18, 19", f"s_cselect_b32 s{sO18}, {OOB}, 0",
             f"s_cmp_eq_u32 s{sW}, 0", f"s_cselect_b32 s{sT1}, 16, s{sT1}", f"s_cselect_b32 s{sO16}, {OOB}, 0", f"s_cselect_b32 s{sHA}, 56, s{sT2}",
             *([f"s_lshr_b32 s{sT3}, s{sT0}, 2", f"s_xor_b32 s{sT3}, s{sT3}, s{sT0}", f"s_and_b32 s{sT3}, s{sT3}, 1"] if OPT.rot2 else [f"s_mov_b32 s{sT3}, 0"]),
             f"s_mul_i32 s{sWR}, s{sT1}, s{sT3}", f"s_sub_u32 s{sT1}, s{sT1}, 9", f"s_mul_i32 s{sT1}, s{sT1}, s{sT3}",
             f"s_lshl_b32 s{sHR}, s{sWR}, 12", f"s_add_u32 s{sHA}, s{sHA}, s{sT1}", f"s_mov_b32 s{sHB}, s{sHA}", f"s_lshl_b32 s{sHA}, s{sHA}, 12",
             f"s_mul_i32 s{sT3}, s{sTB}, {TBB}", f"s_add_u32 s{sHA}, s{sHA}, s{sT3}",
             f"s_add_u32 s{sOW2}, s{sT2}, s{sT1}", f"s_lshl_b32 s{sOW2}, s{sOW2}, 15", f"s_lshl_b32 s{sT3}, s{sCT}, 7", f"s_add_u32 s{sOW2}, s{sOW2}, s{sT3}",
             f"s_mov_b32 s{sC2}, 32768", f"s_movk_i32 s{sH36}, 7168",
             *([f"s_lshl_b32 s{sHB}, s{sHB}, 12", f"s_add_u32 s{sP}, s22, {W2C}", f"s_addc_u32 s{sP+1}, s23, 0",
                f"s_cmp_eq_u32 s{sCT}, s{sR4}", f"s_cselect_b64 s[{SC}:{SC+1}], s[{sP}:{sP+1}], s[{SW}:{SW+1}]", f"s_cselect_b32 s{SC+2}, 294912, s{SW+2}",
                f"s_cselect_b32 s{sOW2}, s{sHB}, s{sOW2}", f"s_cselect_b32 s{sC2}, 4096, s{sC2}", f"s_cselect_b32 s{sH36}, 0, s{sH36}", f"s_cselect_b64 vcc, -1, 0", f"s_cselect_b32 s{sR4}, -1, 0",
                f"v_cndmask_b32 v{vDW}, v{vDW}, v{vL16}, vcc",
                f"s_lshl_b32 s{sCPO}, s{sE2}, 10", f"s_add_u32 s{sCPO}, s{sCPO}, {W2C}", f"s_cmp_lt_u32 s{sE2}, 288", f"s_cselect_b64 s[{sCPX}:{sCPX+1}], -1, 1", f"s_cselect_b32 s{sCPO}, s{sCPO}, {OOB}",
                f"s_cselect_b32 s{sE2}, s{sE2}, {OOB//4}", f"s_lshl_b32 s{sE2}, s{sE2}, 2", f"s_add_u32 s{sE2}, s{sE2}, {CPFLAG}"]
               if OPT.slowfix else [f"s_mov_b64 s[{SC}:{SC+1}], s[{SW}:{SW+1}]", f"s_mov_b32 s{SC+2}, s{SW+2}", f"v_lshl_add_u32 v{vDW}, v{TMP}, 10, v{TMP+2}"]),
             f"s_mul_i32 s{sWR}, s{sWR}, s{sC2}",
             f"s_lshl_b32 s{sFA}, s{sTB}, 8", f"s_add_u32 s{sT2}, s{sFA}, {FLAGA+128}", f"s_add_u32 s{sFA}, s{sFA}, {FLAGB}",
             f"s_cmp_eq_u32 s{sW}, 0", f"s_cselect_b32 s{sFA}, s{sT2}, s{sFA}",
             f"s_lshl_b32 s{sT1}, s{sRB}, 1", f"s_add_u32 s{sT1}, s{sT1}, s{sTG}", f"s_mul_i32 s{sOH}, s{sT1}, {TBB}",
             f"s_lshl_b32 s{sOF}, s{sT1}, 5", f"s_lshl_b32 s{sT2}, s{sJ}, 1", f"s_add_u32 s{sT2}, s{sT2}, s{sCH}", f"s_add_u32 s{sOF}, s{sOF}, s{sT2}",
             f"s_and_b32 s{sT3}, s{sT0}, 16", f"s_add_u32 s{sOF}, s{sOF}, s{sT3}", f"s_lshl_b32 s{sOF}, s{sOF}, 3",
             f"s_lshl_b32 s{sT2}, s{sT2}, 1", f"s_add_u32 s{sKV}, s{sT2}, s{sTG}",
             f"v_lshrrev_b32 v{vE3}, 5, v{vL}", f"v_and_b32 v{vQ1}, 31, v{vL}", f"v_lshlrev_b32 v{vQ1}, 3, v{vQ1}", f"v_lshl_add_u32 v{vQ0}, v{vE3}, 10, v{vQ1}",
             f"v_and_b32 v{vG1}, 0x78, v{vQ1}", f"v_bfe_u32 v{T}, v{vL}, 4, 1", f"v_mul_u32_u24 v{T}, {28*2048}, v{T}", f"v_add_u32 v{vG1}, v{vG1}, v{T}", f"v_lshl_add_u32 v{vG0}, v{vE3}, 10, v{vG1}",
             f"v_lshl_add_u32 v{vG1}, v{vE3}, 30, v{vG1}", f"s_lshl_b32 s{sT1}, s{sT1}, 9", f"s_add_u32 s{sT1}, s{sT1}, {STATS}", f"v_add_u32 v{vSV}, s{sT1}, v{vQ1}",
             f"v_lshl_add_u32 v{vQ1}, v{vE3}, 30, v{vQ1}", f"v_add_u32 v{vE3}, -1, v{vE3}"]
        L += self.rdpattern("glu", vRG) + self.rdpattern("w2", vR2)
        L += [f"v_and_b32 v{XA}, 31, v{vL}", f"s_lshl_b32 s{sT3}, s{sTG}, 6", f"v_add_u32 v{XA}, s{sT3}, v{XA}", f"v_lshlrev_b32 v{XA}, 7, v{XA}",
              f"v_lshrrev_b32 v{T}, 5, v{vL}", f"v_bfe_u32 v{XA+1}, v{vL}, 1, 3", f"v_xor_b32 v{T}, v{T}, v{XA+1}", f"v_lshl_add_u32 v{XA}, v{T}, 4, v{XA}"]
        L += [f"v_xor_b32 v{XA+q}, {32*q}, v{XA}" for q in (1, 2, 3)]
        if OPT.touch:
            U = MF
            def lim(r, n): return [f"v_cmp_gt_u32 vcc, {n}, v{vL}", f"v_cndmask_b32 v{r}, v{T+1}, v{r}, vcc"]
            L += [f"v_mov_b32 v{T+1}, {OOB}", f"s_lshl_b32 s{sT2}, s2, 2", f"s_add_u32 s{sT2}, s{sT2}, s{sW}"]
            if 1 in OPT.touch:
                L += [f"s_mul_i32 s{sT3}, s2, 3", f"s_add_u32 s{sT3}, s{sT3}, s{sW}", f"s_sub_u32 s{sT3}, s{sT3}, 1", f"s_mul_i32 s{sT3}, s{sT3}, 19", f"s_lshl_b32 s{sBT}, s2, 4",
                      f"s_cmp_eq_u32 s{sW}, 0", f"s_cselect_b32 s{sT3}, s{sBT}, s{sT3}", f"s_cselect_b32 s{sBT}, 16, 19",
                      f"v_add_u32 v{U}, s{sT3}, v{vL}", f"v_lshlrev_b32 v{U}, 7, v{U}"] + lim(U, f"s{sBT}")
            if 2 in OPT.touch:
                L += [f"v_lshl_add_u32 v{U+1}, s{sT2}, 2, v{vL}", f"v_lshrrev_b32 v{T}, 3, v{U+1}", f"v_mul_u32_u24 v{T}, 3072, v{T}", f"v_and_b32 v{U+1}, 7, v{U+1}", f"v_lshl_add_u32 v{U+1}, v{U+1}, 7, v{T}"] + lim(U+1, 4)
            if 3 in OPT.touch:
                L += [f"v_lshl_add_u32 v{U+2}, s{sT2}, 1, v{vL}", f"v_lshrrev_b32 v{T}, 2, v{U+2}", f"v_mul_u32_u24 v{T}, 3584, v{T}", f"v_and_b32 v{U+2}, 3, v{U+2}", f"v_lshl_add_u32 v{U+2}, v{U+2}, 7, v{T}", f"v_add_u32 v{U+2}, 3072, v{U+2}"] + lim(U+2, 2)
            if 4 in OPT.touch:
                L += [f"v_lshl_add_u32 v{U+3}, s{sT2}, 3, v{vL}", f"v_lshrrev_b32 v{T}, 4, v{U+3}", f"v_mul_u32_u24 v{T}, 3584, v{T}", f"v_bfe_u32 v{T+2}, v{U+3}, 1, 3", f"v_mul_u32_u24 v{T+2}, 384, v{T+2}", f"v_add_u32 v{T}, v{T}, v{T+2}",
                      f"v_and_b32 v{U+3}, 1, v{U+3}", f"v_lshl_add_u32 v{U+3}, v{U+3}, 7, v{T}", f"v_add_u32 v{U+3}, 128, v{U+3}"] + lim(U+3, 8)
        for t in L: s(t)

    def type_setup(self, typ):
        s = self.s; T = vLT
        if typ == "Q":
            L = [f"s_mul_i32 s{sCS}, s{sJ}, {3*2048}", f"s_lshl_b32 s{sT1}, s{sCH}, 8", f"s_add_u32 s{sCS}, s{sCS}, s{sT1}", f"s_add_u32 s{sCS}, s{sCS}, {COLSUM+24*2048}",
                 f"s_add_u32 s{sCS+1}, s{sCS}, 128", f"s_add_u32 s{sCS+2}, s{sCS}, 2048", f"s_add_u32 s{sCS+3}, s{sCS}, {2048+128}",
                 f"s_lshl_b32 s{sCS+4}, s{sJ}, 11", f"s_add_u32 s{sCS+4}, s{sCS+4}, s{sT1}", f"s_add_u32 s{sCS+4}, s{sCS+4}, {COLSUM}",
                 f"s_lshl_b32 s{sKF}, s{sKV}, 7", f"s_add_u32 s{sKF}, s{sKF}, {KVFLAG}", f"s_mul_i32 s{sKV}, s{sKV}, {16*KVS}", f"s_add_u32 s{sKV}, s{sKV}, {KV}",
                 f"s_or_b32 s{sT3}, s{sRB}, s{sJ}", f"s_or_b32 s{sT3}, s{sT3}, s{sW}", f"s_cmp_eq_u32 s{sT3}, 0", f"s_cselect_b32 s{sEO}, {EPOCH}, {OOB}",
                 f"v_mov_b32 v{vD3}, v{VW}", f"v_mul_u32_u24 v{vD2}, 3072, v{TMP}", f"v_add_u32 v{vD2}, v{vD2}, v{TMP+2}",
                 f"v_add_u32 v{WA}, {SLOT}, v{vRG}", f"v_xor_b32 v{WA+1}, 32, v{WA}"]
            L += self.rdpattern("q", vRS)
            L += [f"v_mov_b32 v{KF}, 0x3f80", f"v_and_b32 v{T}, 1, v{vL}", f"v_lshlrev_b32 v{T}, 4, v{T}", f"v_lshlrev_b32 v{T}, v{T}, v{KF}",
                  f"v_lshrrev_b32 v{KF}, 3, v{vL}", f"v_xor_b32 v{KF}, v{KF}, v{vL}", f"v_and_b32 v{KF}, 4, v{KF}", f"v_and_b32 v{KF+1}, 16, v{vL}", f"v_or_b32 v{KF}, v{KF}, v{KF+1}",
                  f"v_bfe_u32 v{KF+1}, v{vL}, 1, 1", f"v_or_b32 v{KF}, v{KF}, v{KF+1}", f"v_bfe_u32 v{KF+1}, v{vL}, 3, 1", f"v_lshl_or_b32 v{KF+3}, v{KF+1}, 1, v{KF}"]
            for i in range(4): L += [f"v_cmp_eq_u32 vcc, {i}, v{KF+3}", f"v_cndmask_b32 v{KF+i}, 0, v{T}, vcc"]
            pats = ["g", "g", "g", "g", "q"]
        else:
            L = [f"s_lshl_b32 s{sCS}, s{sJ}, 11", f"s_lshl_b32 s{sT1}, s{sCH}, 8", f"s_add_u32 s{sCS}, s{sCS}, s{sT1}", f"s_add_u32 s{sCS+1}, s{sCS}, {COLSUM+16*2048}", f"s_add_u32 s{sCS}, s{sCS}, {COLSUM+8*2048}",
                 f"s_mul_i32 s{sCS+2}, s{sJ}, {3*2048}", f"s_add_u32 s{sCS+2}, s{sCS+2}, s{sT1}", f"s_add_u32 s{sCS+2}, s{sCS+2}, {COLSUM+26*2048}", f"s_add_u32 s{sCS+3}, s{sCS+2}, 128",
                 f"s_lshr_b32 s{sCS+4}, s{sJ}, 1", f"s_lshl_b32 s{sCS+4}, s{sCS+4}, 11", f"s_and_b32 s{sT1}, s{sJ}, 1", f"s_lshl_b32 s{sT1}, s{sT1}, 1", f"s_add_u32 s{sT1}, s{sT1}, s{sCH}", f"s_lshl_b32 s{sT1}, s{sT1}, 7",
                 f"s_add_u32 s{sCS+4}, s{sCS+4}, s{sT1}", f"s_add_u32 s{sCS+4}, s{sCS+4}, {COLSUM+48*2048}",
                 f"s_lshl_b32 s{sKV}, s{sKV}, 4", f"s_add_u32 s{sKV}, s{sKV}, s{sRB}", f"s_lshl_b32 s{sKF}, s{sKV}, 3", f"s_add_u32 s{sKF}, s{sKF}, {KVFLAG}",
                 f"s_mul_i32 s{sKV}, s{sKV}, {KVS}", f"s_add_u32 s{sKV}, s{sKV}, {KV}",
                 f"v_mul_u32_u24 v{vD2}, 3584, v{TMP}", f"v_add_u32 v{vD2}, v{vD2}, v{TMP+2}",
                 f"v_and_b32 v{T}, 3, v{vL}", f"v_lshlrev_b32 v{T}, 4, v{T}", f"v_lshrrev_b32 v{vD3}, 2, v{vL}", f"v_mul_u32_u24 v{vD3}, 3584, v{vD3}", f"v_add_u32 v{vD3}, v{vD3}, v{T}",
                 f"s_mov_b32 s{sMK}, 0xffff0000", f"s_mov_b32 s{sMK+1}, 0xffff0000"]
            L += self.rdpattern("kv", WA) + [f"v_add_u32 v{WA}, {SLOT}, v{WA}", f"v_xor_b32 v{WA+1}, 32, v{WA}", f"v_add_u32 v{WA+1}, 2048, v{WA+1}"]
            L += self.rdpattern("half", vRS)
            L += [f"v_mov_b32 v{KF+i}, 0x3f803f80" for i in range(4)]
            pats = ["q", "q", "g", "g", "g"]
        for t in L: s(t)
        gl = [f"buffer_load_dwordx2 {v(ST,2)}, v{vSV}, {srd(SS)}, 0 offen sc1", f"buffer_load_dwordx2 {v(ST+2,2)}, v{vSV}, {srd(SS)}, 0 offen offset:256 sc1"]
        for u, p in enumerate(pats):
            r0, r1 = (vG0, vG1) if p == "g" else (vQ0, vQ1)
            gl += [f"buffer_load_dwordx2 {v(CS+4*u,2)}, v{r0}, {srd(SS)}, s{sCS+u} offen sc1", f"buffer_load_dwordx2 {v(CS+4*u+2,2)}, v{r1}, {srd(SS)}, s{sCS+u} offen offset:512 sc1"]
        self.gran_loads = gl

    def stats_compute(self):
        s = self.s; T = TMP
        s(f"v_mov_b32 v{T}, 0\nv_mov_b32 v{T+1}, 0\nv_mov_b32 v{T+2}, 0x3f803f80")
        s.wait(vm=self.ld_st[1])
        self.stamp(2)
        for i in range(8): s(f"v_dot2c_f32_bf16 v{T}, v{T+8+i}, v{T+2}\nv_dot2c_f32_bf16 v{T+1}, v{T+8+i}, v{T+8+i}")
        for d in ("row_shr:1", "row_shr:2", "row_shr:4", "row_shr:8", "row_bcast:15 row_mask:0xa"):
            for r in (T, T+1):
                s(f"v_add_f32 v{r}, v{r}, v{r} {d}" + ("" if "mask" in d else " row_mask:0xf") + " bank_mask:0xf" + (" bound_ctrl:1" if "shr" in d else ""))
        s(f"v_mul_f32 v{T}, {hex(f2u(1/512))}, v{T}\nv_mul_f32 v{T+1}, {hex(f2u(1/512))}, v{T+1}")
        s(f"v_fma_f32 v{T+1}, -v{T}, v{T}, v{T+1}\nv_max_f32 v{T+1}, 0, v{T+1}")
        s(f"v_cvt_pk_bf16_f32 v{T+2}, v{T}, v{T+1}")
        s(f"v_and_b32 v{T+1}, 0xffff0000, v{T+2}\nv_add_f32 v{T+1}, {hex(f2u(1e-5))}, v{T+1}")
        s(f"v_cvt_pk_bf16_f32 v{T+1}, v{T+1}, v{T+1}\nv_and_b32 v{T+1}, 0xffff0000, v{T+1}\nv_sqrt_f32 v{T+1}, v{T+1}")
        s(f"s_mov_b32 s{sT3}, 0xffff\nv_cvt_pk_bf16_f32 v{T+1}, v{T+1}, v{T+1}")
        s(f"v_lshlrev_b32 v{T+4}, 3, v{T+4}\nv_bfi_b32 v{T+2}, s{sT3}, v{T+2}, v{T+1}")
        s("s_waitcnt lgkmcnt(0)")
        s(f"s_mul_i32 s{sEP}, s{sEP}, 0x9E3779B1\ns_add_u32 s{sEP}, s{sEP}, 0x7F4A7C15\ns_and_b32 s{sTAG}, s{sEP}, 0xBFFFBFFF")
        s(f"v_mov_b32 v{T+3}, s{sTAG}\nv_and_b32 v{vE3}, s{sTAG}, v{vE3}")
        s("s_mov_b32 exec_lo, 0x80000000\ns_mov_b32 exec_hi, 0x80000000")
        s(f"buffer_store_dwordx2 {v(T+2,2)}, v{T+4}, {srd(SS)}, s{sDT} offen sc1")
        s("s_mov_b64 exec, -1")
    def cp_store(self):
        s = self.s
        if not OPT.slowfix: return
        s.wait(vm=self.ld_cp)
        s(f"s_mov_b64 exec, s[{sCPX}:{sCPX+1}]")
        self.st_cp = s(f"buffer_store_dwordx4 {v(TMP+20,4)}, v{vL16}, {srd(SS)}, s{sCPO} offen sc1"); self.st_cp.lines = 2
        s("s_mov_b64 exec, -1")
    def cp_poll(self):
        s = self.s
        yield Gate(lambda: self.prep_done and self.slotno >= OPT.cp_poll_at)
        ad, ex = vQ0, vQ1
        for x in (f"s_cmp_eq_u32 s{sW}, 0\ns_cselect_b32 s{sT3}, 31, 37\ns_cselect_b32 s{sBT}, 4, s{sW}", f"s_mul_i32 s{sBT}, s{sBT}, 304", f"s_add_u32 s{sBT}, s{sBT}, {CPFLAG-304}",
                  f"s_cmp_eq_u32 s{sW}, 0\ns_cselect_b32 s{sBT}, {CPFLAG+896}, s{sBT}", f"s_cmp_eq_u32 s{sW}, 3\ns_cselect_b32 s{sT3}, 35, s{sT3}",
                  f"v_min_u32 v{ad}, s{sT3}, v{vL}", f"v_lshlrev_b32 v{ad}, 3, v{ad}", f"s_andn2_b32 s{sT3}, {OOB}, s{sR4}", f"s_or_b32 s{sBT}, s{sBT}, s{sT3}",
                  f"s_and_b32 s{sT3}, s{sTAG}, s{sR4}", f"v_mov_b32 v{ex}, s{sT3}"): s(x); yield
        txt = f"buffer_load_dwordx2 {v(VX,2)}, v{ad}, {srd(SS)}, s{sBT} offen sc1"
        ld = s(txt); ld.lines = 1; yield
        yield self.after_slots(OPT.kv_poll_wait)
        s.wait(vm=ld); yield
        yield from self.check([(VX, f"v{ex}"), (VX+1, f"v{ex}")], [txt], "cp" + self.typ)
        self.cp_ok = True

    def colsum_task(self):
        s = self.s; R0 = CS; A = TMP+24; T = TMP
        yield self.after_slots(OPT.cs_delay)
        for n in range(6):
            if n % 2 == 0: s.wait(vm=self.ld_cs[n+1]); yield
            for r in range(4):
                R = R0+4*n+r
                if n == 0:
                    s(f"v_lshlrev_b32 v{A+2*r}, 16, v{R}"); yield
                    s(f"v_and_b32 v{A+2*r+1}, 0xffff0000, v{R}"); yield
                else:
                    s(f"v_lshlrev_b32 v{T+r}, 16, v{R}"); yield
                    s(f"v_and_b32 v{R}, 0xffff0000, v{R}"); yield
                    s(f"v_add_f32 v{A+2*r}, v{A+2*r}, v{T+r}"); yield
                    s(f"v_add_f32 v{A+2*r+1}, v{A+2*r+1}, v{R}"); yield
        self.cs_consumed = True
        L = [f"v_permlane32_swap_b32 v{A+e}, v{A+e+4}" for e in range(4)]
        L += [f"v_and_b32 v{T}, 7, v{vL}", f"v_lshlrev_b32 v{T}, 3, v{T}"] + [f"v_add_f32 v{A+e}, v{A+e}, v{A+e+4}" for e in range(4)]
        L += [f"v_lshrrev_b32 v{T+1}, 3, v{vL}", f"v_or_b32 v{T}, v{T}, v{T+1}"] + [f"v_permlane16_swap_b32 v{A+e}, v{A+e+2}" for e in range(2)]
        L += [f"s_lshl_b32 s{sPP}, s{sW}, 2", f"s_add_u32 s{sPP}, s{sPP}, {XTRA+2048}"] + [f"v_add_f32 v{A+e}, v{A+e}, v{A+e+2}" for e in range(2)]
        L += [f"v_lshl_add_u32 v{T}, v{T}, 4, s{sPP}", f"v_add_u32 v{T+1}, {XTRA+2048}, v{vL16}",
              f"v_add_f32 v{A+2}, v{A}, v{A} row_ror:8 row_mask:0xf bank_mask:0x3", f"v_lshrrev_b32 v{T+8}, 1, v{vL16}", f"v_mov_b32 v{T+9}, s{sTAG}",
              f"v_add_f32 v{A+2}, v{A+1}, v{A+1} row_ror:8 row_mask:0xf bank_mask:0xc"]
        for x in L: s(x); yield
        self.pend_w = s(f"ds_write_b32 v{T}, v{A+2}"); yield
        yield self.after_bar()
        rd = s(f"ds_read_b128 {v(T+4,4)}, v{T+1}"); yield
        yield self.after_slots(3)
        s.wait(lg=rd); yield
        for x in (f"v_add_f32 v{T+4}, v{T+4}, v{T+5}", f"v_add_f32 v{T+6}, v{T+6}, v{T+7}", f"v_mov_b32 v{T+7}, v{T+9}", f"v_add_f32 v{T+4}, v{T+4}, v{T+6}",
                  f"v_cvt_pk_bf16_f32 v{T+5}, v{T+4}, v{T+4}", f"v_lshlrev_b32 v{T+5}, 16, v{T+5}", f"v_sub_f32 v{T+5}, v{T+4}, v{T+5}",
                  f"v_cvt_pk_bf16_f32 v{T+6}, v{T+4}, v{T+5}"): s(x); yield
        s(f"s_mov_b64 exec, s[{sW0X}:{sW0X+1}]")
        s(f"buffer_store_dwordx2 {v(T+6,2)}, v{T+8}, {srd(SS)}, s{sPS} offen sc1")
        if OPT.slowfix:
            s.wait(vm=self.st_cp)
            s("s_mov_b64 exec, 1")
            s(f"buffer_store_dword v{T+7}, off, {srd(SS)}, s{sE2} sc1").lines = 0
        s("s_mov_b64 exec, -1"); yield

    def pass_of(self, st):
        b = 0
        for p, P in enumerate(PASSES[self.typ]):
            if st < b + P[1]: return p, st - b
            b += P[1]
        return None, None
    def items_of(self, st):
        if st < 0 or st >= 20: return []
        return [("x", st), ("w", st)] if st < 8 else [("w", st)]

    def dma_task(self):
        s = self.s; typ = self.typ
        items = []
        for st in range(1, 20):
            items += self.items_of(st)
            for key, at in OPT.touch.items():
                if max(at, 1) == st: items.append(("touch", key))
            if st == OPT.gran_after: items.append(("gran", 0))
        items += [("v2", c) for c in range(19)]
        for kind, st in items:
            self.cur_item = (kind, st)
            if kind == "gran":
                yield Gate(lambda: self.cs_consumed)
                for t in self.gran_loads:
                    self.ld_gran = s(t); self.ld_gran.lines = 4 if (" s" in t.split(",")[3] and "offset" not in t) else 2; yield "d"
                self.gran_issued = True; self.log.append(f"gran@{self.slotno}")
                continue
            if kind == "touch":
                for sr_ in {1: [SW], 2: [SQ], 3: [SG, SU], 4: [SG, SU]}[st]:
                    i_ = s(f"buffer_load_dword v{MF+4}, v{MF-1+st}, {srd(sr_)}, 0 offen"); i_.lines = {1: 18, 2: 4, 3: 2, 4: 8}[st]; yield "d"
                continue
            pre = []
            if kind == "w":
                p, ls = self.pass_of(st); pk, ns, _, _, (cm, ca) = PASSES[typ][p]; P = PITCH[pk]
                rows = 512//ns
                if ls == 0:
                    base = vD2 if p == 1 else vD3
                    if pk == "q": pre += [f"v_mov_b32 v{VW}, v{base}"] + [f"v_add_u32 v{VW+n}, {n*(8*P-1024)}, v{base}" for n in (1, 2, 3)]
                    else:
                        d = (16 if pk == "half" else 8)*P - 1024
                        pre += [f"v_mov_b32 v{VW}, v{base}", f"v_add_u32 v{VW+1}, {d}, v{base}", f"v_xor_b32 v{VW+2}, 32, v{base}", f"v_add_u32 v{VW+3}, {d}, v{VW+2}"]
                    pre += [f"s_mul_i32 s{sOW}, s{sJ}, {cm}", f"s_mul_i32 s{sDT}, s{sW}, {rows//4*P}", f"s_add_u32 s{sOW}, s{sOW}, s{sDT}",
                            f"s_mul_i32 s{sDT}, s{sROT}, {256*P}", f"s_add_u32 s{sOW}, s{sOW}, s{sDT}"] + ([f"s_add_u32 s{sOW}, s{sOW}, {ca}"] if ca else [])
                if ls == ns//2 and OPT.rot1: pre += [f"s_mul_i32 s{sDT}, s{sROT}, {512*P}", f"s_sub_u32 s{sOW}, s{sOW}, s{sDT}"]
            if (kind, st) == ("x", 4) and OPT.rot1: pre += [f"s_lshl_b32 s{sDT}, s{sROT}, 10", f"s_sub_u32 s{sOX}, s{sOX}, s{sDT}"]
            if (kind, st) == ("v2", 0):
                if OPT.slowfix: yield Gate(lambda: self.cp_ok)
                pre += [f"v_mov_b32 v{VX}, v{vDW}"] + [f"v_add_u32 v{VX+n}, s{sH36}, v{VX+n-1}" for n in (1, 2, 3)]
            if (kind, st) == ("v2", 9) and OPT.rot2: pre += [f"s_sub_u32 s{sOW2}, s{sOW2}, s{sWR}"]
            if (kind, st) == ("v2", 16): pre += [f"s_or_b32 s{sOW2}, s{sOW2}, s{sO16}"]
            if (kind, st) == ("v2", 18): pre += [f"s_or_b32 s{sOW2}, s{sOW2}, s{sO18}"]
            for t in pre: s(t); yield "c"
            yield Gate(lambda: len(self.free) > 0)
            slot = self.free.pop(0)
            self.slot_of[(kind, st)] = slot
            self.log.append(f"{kind}{st}:{self.slotno:.0f}")
            def m0(off, extra=None):
                s(f"s_add_u32 m0, s{sMW}, {slot*SLOT+off}")
                if extra: s(extra)
            if kind in ("x", "v2"):
                so, sr_, step = (sOX, SX, 128) if kind == "x" else (sOW2, SC, f"s{sC2}")
                m0(0)
                for n in range(4):
                    last = s(f"buffer_load_dwordx4 v{VX+n}, {srd(sr_)}, s{so} offen offset:{n*1024}{' sc1' if kind == 'v2' else ''} lds"); yield "d"
                s(f"s_add_u32 s{so}, s{so}, {step}"); yield "c"
            elif pk == "q":
                m0(0)
                for n in range(4):
                    last = s(f"buffer_load_dwordx4 v{VW+n}, {srd(SQ)}, s{sOW} offen offset:{n*1024} lds"); yield "d"
                s(f"s_add_u32 s{sOW}, s{sOW}, {rows*P}"); yield "c"
            else:
                sa, sb = (SQ, SQ) if pk == "kv" else (SG, SU)
                for n in range(4):
                    if n % 2 == 0: m0(n*1024); yield "m"
                    last = s(f"buffer_load_dwordx4 v{VW+n}, {srd(sa if n < 2 else sb)}, s{sOW} offen offset:{(n&1)*1024} lds")
                    if pk == "half": last.lines = 16
                    yield "d"
                s(f"s_add_u32 s{sOW}, s{sOW}, {rows*P}"); yield "c"
            self.last_of[(kind, st)] = last

    def dma_step(self, force_item=None, max_d=None):
        u0 = self.s.units
        while self.dma is not None:
            if force_item is not None:
                if force_item in self.last_of: break
            elif max_d is not None and max_d <= 0: break
            if self.dma_gate is not None:
                if not self.dma_gate.fn():
                    assert force_item is None, f"DMA blocked while forcing {force_item} at {self.slotno}"
                    break
                self.dma_gate = None
            try: r = next(self.dma)
            except StopIteration: self.dma = None; break
            if isinstance(r, Gate): self.dma_gate = r; continue
            if r == "d" and max_d is not None: max_d -= 1
        return self.s.units - u0

    def run_tasks(self, budget):
        s = self.s
        while budget > 0:
            progressed = False
            for t in list(self.tasks):
                if t["gate"] is not None:
                    if not t["gate"].fn(): continue
                    t["gate"] = None
                c0 = s.units; n0 = s.count
                try: r = next(t["gen"])
                except StopIteration:
                    self.tasks.remove(t); progressed = True
                    self.log.append(f"{t['gen'].__name__}@{self.slotno:.0f}"); break
                progressed = True
                if isinstance(r, Gate): t["gate"] = r
                if s.count > n0 and s.hist[-1].kind == "mfma": self.slotno += 1; return budget, True
                budget -= s.units - c0
                break
            if not progressed: break
        return budget, False
    def add_task(self, gen): self.tasks.append({"gen": gen, "gate": None})
    def after_slots(self, n):
        t = self.slotno + n
        return Gate(lambda: self.slotno >= t)
    def after_bar(self):
        t = self.nbar + 1
        return Gate(lambda: self.nbar >= t)
    def slack(self):
        k, st = self.cur_item
        if k == "v2": return 999
        if k == "touch": return OPT.lead
        if k == "gran": return OPT.prep_at - self.mainslot
        return 16*(st-1) + 8 - self.mainslot
    def ta_update(self):
        s = self.s
        for ins in s.vmlog[self.ta_seen:]:
            lines = 8
            if "x2" in ins.mn: lines = 5 if "load" in ins.mn else 1
            lines = getattr(ins, "lines", lines)
            self.ta = max(self.ta, self.slotno + min(0, OPT.ta_init + self.slotno)) + lines*OPT.ta_line
            ins.land = self.ta + OPT.lat
        self.ta_seen = len(s.vmlog)
    def fill(self, p, u0):
        s = self.s
        while True:
            bud = OPT.budget[p] + (OPT.boost if self.boost else 0)
            b = bud - (s.units - u0) - self.debt
            self.ta_update()
            free = self.ta - self.slotno <= OPT.ta_ahead and not self.hold_dma
            sl = self.slack(); did = False
            first = OPT.dma_first[p + (10 if self.typ == "Q" else 0)] or not self.boost
            if b > 0 and ((free and (sl <= OPT.lead or first)) or sl <= OPT.crit): b -= self.dma_step(max_d=1); did = True
            b, mf = self.run_tasks(b)
            self.ta_update()
            if not mf and not did and b >= 2 and self.ta - self.slotno <= OPT.ta_ahead and not self.hold_dma: b -= self.dma_step(max_d=1)
            self.debt = max(0, -b) if not mf else 0
            if not mf: break
            u0 = s.units

    def corr(self, p, swap=False, gap=0):
        s = self.s
        _, _, acc, csi, _ = PASSES[self.typ][p]
        for u in range(len(acc)):
            for t in range(2):
                if gap: yield self.after_slots(gap)
                ac = v(acc[u][t], 16); A_, B_ = v(CS+4*csi[u], 4), v(MF+4*t, 4)
                if swap: A_, B_ = B_, A_
                s(f"{MF32} {ac}, {A_}, {B_}, {ac}"); yield
        self.corr_done = p; self.corr_slot.setdefault(p, self.slotno)
    def prep_task(self):
        s = self.s; typ = self.typ
        yield Gate(lambda: self.gran_issued and self.mainslot >= OPT.prep_at)
        s.wait(vm=self.ld_gran); yield
        pairs = [(ST+1, f"s{sTAG}"), (ST+3, f"s{sTAG}")]
        for u in range(5): pairs += [(CS+4*u+1, f"s{sTAG}"), (CS+4*u+3, f"v{vE3}")]
        yield from self.check(pairs, self.gran_loads, typ + "g", vLT)
        s(f"s_mov_b32 s{sT2}, 0x01000100"); yield
        for t in range(2):
            g = ST+2*t
            for x in (f"v_and_b32 v{vD+t}, 0xffff0000, v{g}", f"v_xor_b32 v{g}, 0x8000, v{g}", f"v_rcp_f32 v{vC+t}, v{vD+t}",
                      f"v_perm_b32 v{MF+4*t}, v{g}, v{g}, s{sT2}", f"v_mov_b32 v{MF+4*t+1}, 0", f"v_mov_b32 v{MF+4*t+2}, v{MF+4*t}", f"v_mov_b32 v{MF+4*t+3}, 0",
                      f"v_mul_f32 v{vC+t}, {hex(LOG2E)}, v{vC+t}"): s(x); yield
        self.prep_done = True
        yield from self.corr(0, swap=(typ == "H"))

    def glu_ep(self, R, t, soff, imm):
        s = self.s; G, U = R, R+8
        for i in range(8): s(f"v_mul_f32 v{G+i}, v{vC+t}, v{G+i}"); yield
        for i in range(8): s(f"v_exp_f32 v{G+i}, -v{G+i}"); yield
        for i in range(8): s(f"v_fma_f32 v{G+i}, v{G+i}, v{vD+t}, v{vD+t}"); yield
        for i in range(8): s(f"v_rcp_f32 v{G+i}, v{G+i}"); yield
        for i in range(8): s(f"v_mul_f32 v{U+i}, v{U+i}, v{G+i}"); yield
        for i in range(4): s(f"v_cvt_pk_bf16_f32 v{G+i}, v{U+2*i}, v{U+2*i+1}"); yield
        self.last_store = s(f"buffer_store_dwordx4 {v(G,4)}, v{vL16}, {srd(SH)}, s{soff} offen offset:{imm} sc1"); yield
    def glu_pass(self, p, so):
        s = self.s
        pk, _, acc, _, (cm, ca) = PASSES[self.typ][p]
        if pk == "half": L = [f"s_lshl_b32 s{so}, s{sJ}, 1", f"s_add_u32 s{so}, s{so}, s{sCH}", f"s_add_u32 s{so}, s{so}, 96"]
        else: L = [f"s_mul_i32 s{so}, s{sJ}, 6", f"s_add_u32 s{so}, s{so}, s{sCH}", f"s_lshl_b32 s{so}, s{so}, 1"] + ([f"s_add_u32 s{so}, s{so}, {ca//32}"] if ca else [])
        for x in L + [f"s_lshl_b32 s{so}, s{so}, 11", f"s_add_u32 s{so}, s{so}, s{sOH}"]: s(x); yield
        for u in range(len(acc)):
            for t in range(2): yield from self.glu_ep(acc[u][t], t, so, u*2048+t*1024)
            self.ep_units[p] = u+1
    def flag(self, off, base, delay):
        s = self.s; st = self.last_store
        yield self.after_slots(delay)
        s(f"v_mov_b32 v{ST}, s{sTAG}"); yield
        s(f"v_mov_b32 v{ST+1}, s{sEP}"); yield
        if base: s(f"s_add_u32 s{sT3}, s{off}, {base}")
        s.wait(vm=st)
        s("s_mov_b64 exec, 1")
        s(f"buffer_store_dwordx2 {v(ST,2)}, off, {srd(SS)}, s{sT3 if base else off} sc1")
        s("s_mov_b64 exec, -1"); yield
    def phi(self, R, n, creg, tmp):
        s = self.s
        eps = hex(f2u(1e-6*1.4426950408889634))
        for b in range(0, n, 4):
            for i in range(4): s(f"v_mul_f32 v{R+b+i}, v{creg(b+i)}, v{R+b+i}"); yield
            for i in range(4): s(f"v_exp_f32 v{tmp+i}, v{R+b+i} clamp"); yield
            for i in range(4): s(f"v_max_f32 v{R+b+i}, {eps}, v{R+b+i}"); yield
            for i in range(4): s(f"v_fmac_f32 v{tmp+i}, s{sLN2}, v{R+b+i}"); yield
            for i in range(2): s(f"v_cvt_pk_bf16_f32 v{R+b//2+i}, v{tmp+2*i}, v{tmp+2*i+1}"); yield

    def kv_task(self):
        s = self.s; T = TMP
        yield Gate(lambda: self.prep_done)
        ad, ad2 = vG0, vG1
        for x in (f"s_add_u32 s{sT1}, s{sMW}, {XTRA}", f"v_and_b32 v{ad}, 31, v{vL}", f"v_lshl_add_u32 v{ad}, v{ad}, 2, s{sT1}",
                  f"v_lshrrev_b32 v{ad2}, 5, v{vL}", f"v_lshl_add_u32 v{ad2}, v{ad2}, 4, s{sT1}"): s(x); yield
        s(f"ds_write_b32 v{ad}, v{vC}"); yield
        s(f"ds_write_b32 v{ad}, v{vC+1} offset:128"); yield
        for t in range(2):
            for i in range(4): rd = s(f"ds_read_b128 {v(T+16*t+4*i,4)}, v{ad2} offset:{128*t+32*i}"); yield
        for x in (f"v_add_u32 v{ad}, s{sT1}, v{vL16}", f"v_xor_b32 v{ad2}, 0x2000, v{ad}"): s(x); yield
        yield Gate(lambda: self.mainslot >= 130 and self.slotno >= self.corr_slot.get(0, 1e9) + 2)
        self.boost = True
        s.wait(lg=rd); yield
        tmp = CS
        for t in range(2):
            yield from self.phi(ACCA+16*t, 16, lambda i: T+16*t+i, tmp)
            Vr = ACCA+32+16*t
            for i in range(16): s(f"v_mul_f32 v{Vr+i}, v{T+16*t+i}, v{Vr+i}"); yield
            for i in range(8): s(f"v_cvt_pk_bf16_f32 v{Vr+i}, v{Vr+2*i}, v{Vr+2*i+1}"); yield
        D1, D2 = T, T+16
        first = True
        for t in range(2):
            for kk in range(2):
                pk = v(ACCA+16*t+4*kk, 4); vv = v(ACCA+32+16*t+4*kk, 4)
                s(f"{MF32} {v(D1,16)}, {pk}, {vv}, {'0' if first else v(D1,16)}"); yield
                s(f"{MF32} {v(D2,16)}, {pk}, {v(KF,4)}, {'0' if first else v(D2,16)}"); yield
                first = False
        self.ep_units[0] = 2
        yield self.after_slots(2)
        mk = f"s[{sMK}:{sMK+1}]"
        for i in range(8): s(f"v_cndmask_b32 v{D1+i}, v{D1+i}, v{D2+i}, {mk}"); yield
        for i in range(8, 16): s(f"v_cndmask_b32 v{D1+i}, v{D2+i}, v{D1+i}, {mk}"); yield
        for i in range(4): w = s(f"ds_write_b128 v{ad}, {v(D1+4*i,4)} offset:{1024*i}"); yield
        yield self.after_slots(2)
        s.wait(lg=w)
        s("s_barrier"); yield
        for i in range(4): rd = s(f"ds_read_b128 {v(D2+4*i,4)}, v{ad2} offset:{1024*i}"); yield
        yield self.after_slots(3)
        s.wait(lg=rd); yield
        for i in range(16): s(f"v_add_f32 v{D1+i}, v{D1+i}, v{D2+i}"); yield
        for i in range(8): s(f"v_cvt_pk_bf16_f32 v{D2+i}, v{D1+2*i}, v{D1+2*i+1}"); yield
        for x in self.kvaddr(ad, ad2, True): s(x); yield
        s(f"s_cmp_eq_u32 s{sTG}, 0\ns_cselect_b64 vcc, 0, -1")
        for i in range(4): s(f"v_cndmask_b32 v{D2+i}, v{D2+i}, v{D2+4+i}, vcc")
        yield
        self.last_store = s(f"buffer_store_dwordx4 {v(D2,4)}, v{ad}, {srd(SS)}, s{sKV} offen sc1"); self.last_store.lines = 5; yield
        self.boost = False
        yield from self.flag(sKF, 0, OPT.flag_delay)

    def kvaddr(self, ad, t, store):
        o = [f"v_and_b32 v{ad}, 15, v{vL}", f"v_lshrrev_b32 v{t}, 5, v{vL}", f"v_lshl_add_u32 v{ad}, v{t}, 4, v{ad}", f"v_lshlrev_b32 v{ad}, 4, v{ad}", f"v_lshlrev_b32 v{t}, 4, v{t}", f"v_add_u32 v{t}, 512, v{t}"]
        if store: o += [f"v_and_b32 v{vBT}, 15, v{vL}", f"v_lshl_add_u32 v{t}, v{vBT}, 26, v{t}"]
        o += [f"v_bfe_u32 v{vBT}, v{vL}, 4, 1", f"v_cmp_eq_u32 vcc, s{sTG}, v{vBT}\nv_cndmask_b32 v{ad}, v{t}, v{ad}, vcc"]
        return o
    def kvreg(self, r): return (TMP+4*r) if r < 8 else (ACCA+32+4*(r-8))
    def q_phi(self):
        yield self.after_slots(3)
        for t in range(2): yield from self.phi(ACCB+16*t, 16, lambda i, t=t: vC+t, CS+16)
        self.phi_done = True
    def q_task(self):
        s = self.s
        ad, ad2 = vG0, vG1
        SUM, KA = CS, MF
        for x in (f"v_and_b32 v{ad}, 15, v{vL}", f"v_lshlrev_b32 v{ad}, 3, v{ad}"): s(x); yield
        yield Gate(lambda: self.slotno >= OPT.kv_poll_at)
        txt = f"buffer_load_dwordx2 {v(ST+2,2)}, v{ad}, {srd(SS)}, s{sKF} offen sc1"
        ld = s(txt); yield
        yield self.after_slots(OPT.kv_poll_wait)
        yield Gate(lambda: self.ep_units[0] == 2 and self.corr_done == 2)
        s.wait(vm=ld); yield
        yield from self.check([(ST+2, f"s{sTAG}"), (ST+3, f"s{sEP}")], [txt], "kvf")
        for x in self.kvaddr(ad, ad2, False): s(x); yield
        kl = []; self.hold_dma = True
        for r in range(16):
            yield Gate(lambda: self.ta - self.slotno <= OPT.ta_ahead + OPT.kv_ahead)
            if r and r % 4 == 0: s(f"s_add_u32 s{sKV}, s{sKV}, {4*KVS}")
            kl.append(s(f"buffer_load_dwordx4 {v(self.kvreg(r),4)}, v{ad}, {srd(SS)}, s{sKV} offen offset:{(r%4)*KVS} sc1")); kl[-1].lines = 5; yield
        self.hold_dma = False
        for x in (f"s_add_u32 s{sE1}, s{sMW}, {XTRA}", f"v_add_u32 v{ad}, s{sE1}, v{vL16}", f"s_lshl_b32 s{sE1}, s{sCH}, 12", f"s_add_u32 s{sE1}, s{sE1}, {XTRA}", f"v_add_u32 v{ad2}, s{sE1}, v{vL16}",
                  f"s_lshl_b32 s{sE1}, s{sJ}, 1", f"s_add_u32 s{sE1}, s{sE1}, s{sCH}", f"s_lshl_b32 s{sE1}, s{sE1}, 12", f"s_add_u32 s{sE1}, s{sE1}, {112*2048}", f"s_add_u32 s{sE1}, s{sE1}, s{sOH}",
                  f"v_mov_b32 v{ST+2}, s{sEP}"): s(x); yield
        for r in range(16):
            if r % 4 == 0:
                yield Gate(lambda: getattr(kl[r+3], "land", 1e9) <= self.slotno)
                s.wait(vm=kl[r+3])
            s(f"{MF32} {v(SUM,16)}, {v(KF,4)}, {v(self.kvreg(r),4)}, {'0' if r == 0 else v(SUM,16)}"); yield
        yield self.after_slots(2)
        for i in range(4): s(f"v_cvt_pk_bf16_f32 v{SUM+i}, v{SUM+2*i}, v{SUM+2*i+1}"); yield
        w = s(f"ds_write_b128 v{ad}, {v(SUM,4)}"); yield
        yield self.after_slots(2)
        s.wait(lg=w)
        s("s_barrier"); yield
        s(f"ds_read_b128 {v(KA,4)}, v{ad2}"); yield
        rd = s(f"ds_read_b128 {v(KA+4,4)}, v{ad2} offset:8192"); yield
        s("s_mov_b64 exec, 1")
        i_ = s(f"buffer_store_dword v{ST+2}, off, {srd(SS)}, s{sEO} sc1"); i_.lines = 0
        s("s_mov_b64 exec, -1"); yield
        yield self.after_slots(2)
        yield Gate(lambda: self.phi_done)
        s.wait(lg=rd)
        Ds = [TMP, TMP+16, ACCA+32, ACCA+48]
        for t in range(2):
            for hd in range(2):
                s(f"{MF32} {v(Ds[2*t+hd],16)}, {v(KA+4*hd,4)}, {v(ACCB+16*t+4*hd,4)}, 0"); yield
        for t in range(2):
            for hd in range(2):
                D = Ds[2*t+hd]; num, den = (D, D+8) if hd == 0 else (D+8, D)
                s(f"v_add_f32 v{den}, {hex(f2u(1e-6))}, v{den}"); yield
                s(f"v_rcp_f32 v{den}, v{den}"); yield
                s(f"v_mul_f32 v{num}, s{sLN2}, v{num}"); yield
                s(f"v_mul_f32 v{den+1}, s{sLN2}, v{den}"); yield
                s(f"v_mul_f32 v{num}, v{den}, v{num}"); yield
                for i in range(1, 8): s(f"v_mul_f32 v{num+i}, v{den+1}, v{num+i}"); yield
                for i in range(4): s(f"v_cvt_pk_bf16_f32 v{den+4+i}, v{num+2*i}, v{num+2*i+1}"); yield
                self.last_store = s(f"buffer_store_dwordx4 {v(den+4,4)}, v{vL16}, {srd(SH)}, s{sE1} offen offset:{hd*2048+t*1024} sc1"); yield
        self.q_done = True
        yield from self.flag(sOF, FLAGA, OPT.flag_delay)
        self.flagA_done = True

    def reads_for(self, G):
        st, q = G//4, G % 4
        p, ls = self.pass_of(st); pk = PASSES[self.typ][p][0]
        b = WB + 8*(G % 3)
        if pk in ("kv", "glu"):
            w0 = [f"ds_read_b64_tr_b16 {v(b,2)}, v{WA} offset:{q*4096}", f"ds_read_b64_tr_b16 {v(b+2,2)}, v{WA} offset:{q*4096+512}"]
            w1 = [f"ds_read_b64_tr_b16 {v(b+4,2)}, v{WA+1} offset:{q*4096}", f"ds_read_b64_tr_b16 {v(b+6,2)}, v{WA+1} offset:{q*4096+512}"]
            if st < 8: return [f"ds_read_b128 {a((2*G)*4,4)}, v{XA+q}"] + w0 + [f"ds_read_b128 {a((2*G+1)*4,4)}, v{XA+q} offset:4096"] + w1
            return w0 + w1
        d, e = (1024, 256) if pk == "half" else (2048, 512)
        o = []
        for sb in range(2):
            o += [f"ds_read_b64_tr_b16 {v(b+4*sb,2)}, v{WA} offset:{q*4096+sb*d}", f"ds_read_b64_tr_b16 {v(b+4*sb+2,2)}, v{WA} offset:{q*4096+sb*d+e}"]
        return o
    def mfmas_for(self, G):
        st, q = G//4, G % 4
        p, ls = self.pass_of(st); pk, _, acc, _, _ = PASSES[self.typ][p]
        b = WB + 8*(G % 3); o = []
        for h in range(2):
            u, ks = (h, 4*ls+q) if len(acc) == 2 else (0, 2*(4*ls+q)+h)
            for t in range(2):
                ac = v(acc[u][t], 16); W_, X_ = v(b+4*h, 4), a((2*ks+t)*4, 4)
                if pk == "kv": W_, X_ = X_, W_
                o.append(f"{MF32} {ac}, {W_}, {X_}, {'0' if ks == 0 else ac}")
        return o
    def barrier(self, n):
        s = self.s
        its = self.items_of(n)
        for it in its: self.dma_step(force_item=it)
        vm = max((self.last_of[it] for it in its), key=lambda i: i.vmseq) if its else None
        lg = self.pend_w; self.pend_w = None
        if vm is not None or lg is not None: s.wait(vm=vm, lg=lg)
        s("s_barrier"); self.nbar += 1
        for it in self.items_of(n-2): self.free.append(self.slot_of[it])
    def addr_update(self, txt, Gr):
        s = self.s
        st, q = Gr//4, Gr % 4
        n = st + 1
        if n >= 20: return
        its = self.items_of(n)
        def need(it):
            if it not in self.slot_of: self.dma_step(force_item=it)
            return self.slot_of[it]
        if "b128" in txt and "offset:4096" in txt and n < 8:
            d = ((need(its[0]) - self.slot_of[("x", st)])*SLOT) & 0xffffffff
            if d: s(f"v_add_u32 v{XA+q}, {hex(d)}, v{XA+q}")
        if q == 3 and "tr" in txt:
            rl = self.reads_for(Gr)
            p, ls = self.pass_of(n); pk = PASSES[self.typ][p][0]
            base = need(its[-1])*SLOT
            if ls == 0:
                if txt == rl[-1]:
                    s(f"v_add_u32 v{WA}, {hex(base)}, v{vRG if pk == 'glu' else vRS}")
                    if pk == "glu": s(f"v_xor_b32 v{WA+1}, 32, v{WA}")
            else:
                d = (base - self.slot_of[("w", st)]*SLOT) & 0xffffffff
                for r in range(2):
                    uses = [x for x in rl if f", v{WA+r} " in x]
                    if uses and uses[-1] == txt and d: s(f"v_add_u32 v{WA+r}, {hex(d)}, v{WA+r}")

    def phase1(self, typ):
        s = self.s
        self.typ = typ; self.ntr = 0
        self.tasks = []; self.free = list(range(2, NSLOT)); self.slot_of = {("x", 0): 0, ("w", 0): 1}; self.last_of = {("x", 0): self.x0last, ("w", 0): self.w0last}
        self.dma = self.dma_task(); self.dma_gate = None
        self.slotno = 0; self.mainslot = 0; self.nbar = 0; self.pend_w = None; self.debt = 0; self.boost = False; self.cur_item = ("x", 1)
        self.cs_consumed = self.gran_issued = self.prep_done = self.phi_done = self.q_done = self.cp_ok = self.hold_dma = False
        self.flagA_done = (typ == "H"); self.corr_done = -1; self.corr_slot = {}; self.ep_units = {0: 0, 1: 0, 2: 0}
        self.type_setup(typ)
        self.dma_step(force_item=("x", 1))
        self.stats_compute()
        self.dma_step(force_item=("w", 1))
        self.barrier(0)
        self.stamp(3); self.tr()
        rdl = {}
        for G in (0, 1):
            for x in self.reads_for(G): rdl[G] = s(x); self.addr_update(x, G)
        for it in [("x", 2), ("w", 2)][:OPT.pre_items]: self.dma_step(force_item=it)
        def cps():
            yield self.after_slots(OPT.cs_delay)
            self.cp_store(); yield
        self.ta_seen = len(s.vmlog); self.ta = OPT.ta_init
        self.add_task(cps())
        self.add_task(self.colsum_task())
        self.add_task(self.prep_task())
        if OPT.slowfix: self.add_task(self.cp_poll())
        if typ == "H": self.add_task(self.kv_task())
        G2 = 4*(8 + PASSES[typ][1][1])
        for G in range(80):
            p = 0 if G < 32 else (1 if G < G2 else 2)
            if G in (32, G2): self.log.append(f"|G{G}@{self.slotno}|")
            if G == 32:
                self.stamp(4)
                def c1():
                    yield Gate(lambda: self.corr_done == 0)
                    yield from self.corr(1, gap=3)
                if typ == "Q":
                    def epA():
                        yield Gate(lambda: self.slotno >= self.corr_slot.get(0, 1e9) + 2 and self.mainslot >= 130)
                        yield from self.glu_pass(0, sT1)
                    self.add_task(c1()); self.add_task(epA())
                else: self.add_task(c1())
            if G == G2:
                self.stamp(5)
                assert self.ep_units[0] >= 1 and self.corr_done == 1, "second pass tasks late"
                self.tasks.insert(0, {"gen": self.corr(2, gap=3), "gate": None})
                if typ == "Q":
                    self.add_task(self.q_task()); self.add_task(self.q_phi())
                else:
                    def epB():
                        yield self.after_slots(3)
                        yield from self.glu_pass(1, sT1)
                    self.add_task(epB())
            s.wait(lg=rdl[G])
            nxt = self.reads_for(G+2) if G+2 < 80 else []
            for i, m in enumerate(self.mfmas_for(G)):
                s(m); self.slotno += 1; self.mainslot += 1
                u0 = s.units - (OPT.c_s if i == 3 else 0)
                if i == 0: self.tr()
                if G % 4 == 2 and i == 0: self.barrier(G//4+1)
                if G == 79 and i == 0: self.barrier(21)
                lo, hi = (i*len(nxt)+3)//4, ((i+1)*len(nxt)+3)//4
                for x in nxt[lo:hi]: rdl[G+2] = s(x); self.addr_update(x, G+2)
                self.fill(p, u0)
        self.stamp(6); self.tr()
        self.log.append(f"|end@{self.slotno}|")

    def move_task(self):
        s = self.s
        for x in (f"v_mov_b32 v{WA}, v{vR2}", f"v_xor_b32 v{WA+1}, 64, v{vR2}"): s(x); yield
        base = 0; prev = None
        for c in range(19):
            yield Gate(lambda: ("v2", c) in self.last_of and getattr(self.last_of[("v2", c)], "land", 1e9) <= self.slotno)
            if c >= 16: yield Gate(lambda: self.q_done or self.typ == "H")
            slot = self.slot_of[("v2", c)]
            d = (slot*SLOT - base) & 0xffffffff; base = slot*SLOT
            if d:
                for r in range(2): s(f"v_add_u32 v{WA+r}, {hex(d)}, v{WA+r}"); yield
            s.wait(vm=self.last_of[("v2", c)]); yield
            for sb in range(2):
                n = 2*c+sb
                for c2 in range(2):
                    for hf in range(2):
                        dst = a(8*n+4*c2+2*hf, 2) if n < 32 else v(W2B+8*(n-32)+4*c2+2*hf, 2)
                        rd = s(f"ds_read_b64_tr_b16 {dst}, v{WA+c2} offset:{sb*2048+hf*1024}"); yield
            if prev is not None:
                s.wait(lg=prev[1]); self.free.append(prev[0]); yield
            prev = (slot, rd)
    def tail_ep(self):
        yield from self.glu_pass(2, sPP)
        yield Gate(lambda: self.ep_units[1 if self.typ == "H" else 0] == 2)
        self.tail_done = True
        yield from self.flag(sOF, FLAGB, OPT.tail_flag_delay)
        self.flagB_done = True
    def poll_task(self):
        s = self.s
        yield Gate(lambda: self.tail_done and ("v2", OPT.poll_chunk) in self.last_of)
        for x in (f"s_cmp_eq_u32 s{sW}, 0", f"s_cselect_b32 s{sT2}, 15, 31", f"v_and_b32 v{vQ0}, s{sT2}, v{vL}", f"v_lshlrev_b32 v{vQ0}, 3, v{vQ0}"): s(x)
        yield Gate(lambda: self.flagB_done and self.flagA_done)
        txt = f"buffer_load_dwordx2 {v(MF,2)}, v{vQ0}, {srd(SS)}, s{sFA} offen sc1"
        pl = s(txt); yield
        yield Gate(lambda: self.dma is None and getattr(pl, "land", 1e9) <= self.slotno)
        self.stamp(7); self.tr()
        s.wait(vm=pl)
        for _ in self.check([(MF, f"s{sTAG}"), (MF+1, f"s{sEP}")], [txt], "pa" + self.typ): pass
        self.stamp(8); self.tr()
        self.nvm_h0 = s.nvm
        for n in range(NB-1):
            for _ in self.hissue(n): yield
    def tail(self):
        s = self.s
        self.tail_done = self.flagB_done = False; self.loads = {}
        te = {"gen": self.tail_ep(), "gate": None}
        pri = self.tasks + [te] if self.typ == "H" else [te]
        mid = self.tasks if self.typ == "Q" else []
        low = [{"gen": self.move_task(), "gate": None}, {"gen": self.poll_task(), "gate": None}]
        t0 = self.slotno; u0 = s.units; self.extra = 0.0
        def now(): return t0 + (s.units - u0)/8.0 + self.extra
        def sync(): self.slotno = now(); self.ta_update()
        def step(tl, n):
            self.tasks = list(tl); c0 = s.count
            while s.count - c0 < n and self.tasks:
                c1 = s.count
                self.run_tasks(0.1)
                if s.count > c1 and s.hist[-1].kind == "mfma": self.extra += 0.85
                sync()
                if s.count == c1 and all(t["gate"] is not None and not t["gate"].fn() for t in self.tasks): break
            return self.tasks
        idle = 0; ta_save = OPT.ta_line; OPT.ta_line = OPT.tail_ta
        while pri or mid or low or self.dma is not None:
            c0 = s.count
            sync()
            if self.ta - self.slotno <= OPT.tail_ahead and not self.hold_dma: self.dma_step(max_d=1); sync()
            low = step(low, OPT.tail_low)
            mid = step(mid, OPT.tail_mid if pri else 6)
            pri = step(pri, OPT.tail_pri)
            if s.count == c0:
                self.extra += 0.5; idle += 1
                assert idle < 2000, "tail deadlock"
        OPT.ta_line = ta_save
        self.log.append(f"|tailend@{now():.0f} idle {idle/2}|")
        assert s.nvm - self.nvm_h0 == 2*(NB-1)
        s.wait(lg=0)

    def hissue(self, n):
        s = self.s
        if n >= 38: return
        so, imm = sHA, (n % 2)*2048
        if n == 18 and OPT.rot2: s(f"s_sub_u32 s{so}, s{so}, s{sHR}")
        if n == 32: s(f"s_or_b32 s{so}, s{so}, s{sO16}")
        if n == 36: s(f"s_or_b32 s{so}, s{so}, s{sO18}")
        s(f"buffer_load_dwordx4 {v(hb(n),4)}, v{vL16}, {srd(SH)}, s{so} offen offset:{imm} sc1"); yield
        self.loads[n] = s(f"buffer_load_dwordx4 {v(hb(n)+4,4)}, v{vL16}, {srd(SH)}, s{so} offen offset:{imm+1024} sc1")
        if n % 2 == 1: s(f"s_add_u32 s{so}, s{so}, 4096")
        yield
    def phase2(self):
        s = self.s
        ACC = ACCA; loads = self.loads; XR = TMP; T = vBT; RW, RR = VX, XA
        setup = [f"v_lshrrev_b32 v{T}, 3, v{vL}", f"v_and_b32 v{vSV}, 7, v{vL}", f"v_lshlrev_b32 v{vSV}, 4, v{vSV}", f"v_lshl_add_u32 v{vSV}, v{T}, 10, v{vSV}",
                 f"s_lshl_b32 s{sT1}, s{sTB}, 2", f"s_add_u32 s{sT1}, s{sT1}, s{sW}", f"s_lshl_b32 s{sT1}, s{sT1}, 14", f"s_lshl_b32 s{sT2}, s{sCT}, 7", f"s_add_u32 s{sT1}, s{sT1}, s{sT2}", f"s_add_u32 s{sT2}, s{sT1}, 8192",
                 f"buffer_load_dwordx4 {v(XR,4)}, v{vSV}, {srd(SX)}, s{sT1} offen", f"buffer_load_dwordx4 {v(XR+4,4)}, v{vSV}, {srd(SX)}, s{sT2} offen",
                 f"v_and_b32 v{RW}, 15, v{vL}", f"v_lshlrev_b32 v{RW}, 8, v{RW}", f"v_bfe_u32 v{T}, v{vL}, 4, 1", f"v_lshl_add_u32 v{RW}, v{T}, 14, v{RW}",
                 f"v_lshrrev_b32 v{T}, 5, v{vL}", f"v_xor_b32 v{T}, v{T}, v{vL}", f"v_and_b32 v{T}, 7, v{T}", f"v_lshl_add_u32 v{RW}, v{T}, 4, v{RW}", f"v_add_u32 v{RW}, s{sMW}, v{RW}"]
        setup += [f"v_xor_b32 v{RW+i}, {32*i}, v{RW}" for i in (1, 2, 3)]
        setup += [f"v_lshrrev_b32 v{T}, 3, v{vL}", f"v_lshlrev_b32 v{RR}, 8, v{T}", f"v_and_b32 v{RR+1}, 7, v{vL}", f"v_lshlrev_b32 v{RR+1}, 1, v{RR+1}", f"v_xor_b32 v{T}, v{T}, v{RR+1}",
                  f"v_lshl_add_u32 v{RR}, v{T}, 4, v{RR}", f"s_lshl_b32 s{sT3}, s{sW}, 14", f"v_add_u32 v{RR}, s{sT3}, v{RR}", f"v_xor_b32 v{RR+1}, 16, v{RR}",
                  f"s_mov_b32 s{sT3}, {hex(LOG2E | 0x80000000)}"]
        for n in range(38):
            if n == 32: s(f"s_cmp_eq_u32 s{sW}, 0\ns_cbranch_scc1 L_red")
            s.wait(vm=loads[n])
            ig = self.hissue(n+NB-1)
            for c2 in range(2):
                for t in range(2):
                    ac = v(ACC+32*c2+16*t, 16)
                    W_ = a(8*n+4*c2, 4) if n < 32 else v(W2B+8*(n-32)+4*c2, 4)
                    s(f"{MF32} {ac}, {W_}, {v(hb(n)+4*t,4)}, {'0' if n == 0 else ac}")
                    if c2 == 0: next(ig, None)
                    elif n >= 1:
                        for _ in range(3):
                            if setup: s(setup.pop(0))
                    if c2 == 1 and t == 1 and n % 2 == 1: self.tr()
        s.label("L_red")
        self.stamp(9)
        for c2 in range(2):
            for t in range(2):
                for i in range(4):
                    w = s(f"ds_write_b128 v{RW+i}, {v(ACC+32*c2+16*t+4*i,4)} offset:{t*32768+c2*128}")
        s.wait(lg=w)
        s("s_barrier")
        P = HB; rds = {}
        for n in range(2):
            for wp in (1, 2, 3, 0):
                for h in range(2): rds[(n, wp)] = s(f"ds_read_b128 {v(P+32*n+8*wp+4*h,4)}, v{RR+h} offset:{wp*4096+n*2048}")
        s("s_waitcnt vmcnt(0)")
        for n in range(2):
            B = P+32*n
            s.wait(lg=rds[(n, 3)])
            for i in range(0, 8, 2): s(f"v_pk_add_f32 {v(B+8+i,2)}, {v(B+8+i,2)}, {v(B+16+i,2)}")
            for i in range(0, 8, 2): s(f"v_pk_add_f32 {v(B+8+i,2)}, {v(B+8+i,2)}, {v(B+24+i,2)}")
            for i in range(8): s(f"v_mul_f32 v{B+16+i}, s{sT3}, v{B+8+i}")
            for i in range(8): s(f"v_exp_f32 v{B+16+i}, v{B+16+i}")
            s.wait(lg=rds[(n, 0)])
            for i in range(0, 8, 2): s(f"v_pk_mul_f32 {v(B+i,2)}, {v(B+i,2)}, {v(B+8+i,2)}")
            for i in range(8): s(f"v_add_f32 v{B+16+i}, 1.0, v{B+16+i}")
            for i in range(8): s(f"v_rcp_f32 v{B+16+i}, v{B+16+i}")
            for i in range(4):
                s(f"v_lshlrev_b32 v{B+24+2*i}, 16, v{XR+4*n+i}\nv_and_b32 v{B+25+2*i}, 0xffff0000, v{XR+4*n+i}")
            for i in range(0, 8, 2): s(f"v_pk_fma_f32 {v(B+i,2)}, {v(B+i,2)}, {v(B+16+i,2)}, {v(B+24+i,2)}")
            for i in range(4): s(f"v_cvt_pk_bf16_f32 v{B+8+i}, v{B+2*i}, v{B+2*i+1}")
            s(f"buffer_store_dwordx4 {v(B+8,4)}, v{vSV}, {srd(SO)}, s{sT1 if n == 0 else sT2} offen {OPT.out_flag}")
        self.stamp(10); self.tr(); self.tr()
        self.stamp_flush()
        if OPT.diag == "fixed":
            s.label("L_spin")
            s(f"s_memrealtime s[98:99]\ns_waitcnt lgkmcnt(0)\ns_sub_u32 s98, s98, s100\ns_cmp_lt_u32 s98, {OPT.diag_n}\ns_cbranch_scc1 L_spin")
        s.label("L_exit")
        s("s_endpgm")

def build(over=None):
    for k, val in DEFAULTS.items(): setattr(OPT, k, val)
    for k, val in (over or {}).items():
        assert k in DEFAULTS, k
        setattr(OPT, k, {int(x): y for x, y in val.items()} if isinstance(val, dict) else val)
    g = Gen(); s = g.s
    g.prologue()
    nvm0, hist0 = s.nvm, list(s.hist)
    g.phase1("H"); g.tail()
    cH = s.count; ntrH = g.ntr
    s("s_branch L_p2")
    s.label("L_typeQ")
    s.nvm = nvm0; s.hist = hist0
    g.phase1("Q"); g.tail()
    assert g.ntr == ntrH
    s.label("L_p2")
    g.phase2()
    body = s.text() + "".join(g.tailblocks) + "L_codeend:\n"
    head = f"""; fused LayerNorm + linear attention + GLU block: one launch, 256 co-resident workgroups (generated by my gen/kern2.py)
; @launch grid=(256,1,1) block=(256,1,1) lds={LDS_BYTES}
.amdgcn_target "amdgcn-amd-amdhsa--gfx950"
.text
.globl {NAME}
.p2align 8
.type {NAME},@function
{NAME}:
"""
    foot = f""".section .rodata,"a"
.p2align 6
.amdhsa_kernel {NAME}
  .amdhsa_next_free_vgpr 512
  .amdhsa_next_free_sgpr 102
  .amdhsa_accum_offset 256
  .amdhsa_group_segment_fixed_size 0
  .amdhsa_kernarg_size 80
  .amdhsa_user_sgpr_count 2
  .amdhsa_user_sgpr_kernarg_segment_ptr 1
  .amdhsa_system_sgpr_workgroup_id_x 1
  .amdhsa_float_denorm_mode_32 3
.end_amdhsa_kernel
"""
    print(" ".join(g.log), file=sys.stderr)
    print(f"instrs {s.count} (H path {cH}) nop states {s.nops}", file=sys.stderr)
    return head + body + foot

if __name__ == "__main__":
    open(sys.argv[1], "w").write(build(json.loads(sys.argv[2]) if len(sys.argv) > 2 else {}))
```

```python
import sys, struct, json
from emit import Stream

NAME = "recurrent_scan__linear_attn_block__glu_gated_glu__prompt_kernel"
EPOCH, STATS, FLAGA, FLAGB, KVFLAG = 0, 0x1000, 0x5000, 0x7000, 0x9000
CPFLAG, COLSUM, KV, STAMP, W2C, SMALL = 0xA000, 0x10000, 0x40000, 0xC0000, 0x100000, 0x148000
KVS = 640
H_OFF, TBB = 0x200000, 144*2048
H_BYTES = 32*TBB
OOB = 0x40000000
NSLOT, SLOT, XTRA = 9, 16384, 147456
LDS_BYTES = 163840
sBT, sROT, sDT, sMK, sP, sSH = 0, 1, 3, 10, 20, 21
sCPX, sCPO, sC2, sWR, sHR, sO16, sO18, sH36, sW0X = 4, 6, 7, 8, 9, 12, 13, 14, 16
SX, SQ, SG, SU, SW, SO, SS, SH, SC = 24, 28, 32, 36, 40, 44, 48, 52, 56
sW, sTG, sCH, sRB, sJ, sTAG, sEP, sTB, sCT = 60, 61, 62, 63, 64, 65, 66, 67, 68
sOX, sOW, sMW, sLN2, sOH, sOF, sT0, sT1, sT2, sT3 = 69, 70, 71, 72, 73, 74, 75, 76, 77, 78
sCS = 79
sPO, sPP, sPS = 84, 85, 86
sOW2, sHA, sHB, sFA, sKV, sKF, sEO, sCNT, sE1, sE2, sR4 = 87, 88, 89, 90, 91, 92, 93, 94, 95, 96, 97
sST = 98
def srd(n): return f"s[{n}:{n+3}]"
vBT, vL, vL16, vDT = 0, 1, 2, 3
VX, VW, XA, WA = 4, 8, 12, 16
vCK = 15
vSV, vG0, vG1, vQ0, vQ1, vE3 = 18, 19, 20, 21, 22, 23
CS, ST, MF, vC, vD, KF, TMP, WB = 24, 44, 48, 56, 58, 60, 64, 96
vRG, vRS, vR2, vD2, vD3, vDW, vTR = 120, 121, 122, 123, 124, 125, 126
ACCA, ACCB = 128, 192
vLT, vPFD = 80, 255
HB, NB, W2B = ACCB, 8, 72
def hb(n): return HB + 8*(n % NB)
def v(b, n=1): return f"v{b}" if n == 1 else f"v[{b}:{b+n-1}]"
def a(b, n=1): return f"a{b}" if n == 1 else f"a[{b}:{b+n-1}]"
LOG2E = 0x3fb8aa3b; LN2 = 0x3f317218
def f2u(x): return struct.unpack("<I", struct.pack("<f", x))[0]
MF32 = "v_mfma_f32_32x32x16_bf16"

class Opt: pass
OPT = Opt()
DEFAULTS = dict(stamps=False, trace=False, spin=20000, code_pf=True, pf_lines=3, rot1=1, diag=None, diag_n=0,
    c_vm4=2, c_vm2=2, c_dsw=3, c_s=0.6, c_bar=5, budget={0: 6, 1: 6, 2: 6}, boost=1, lead=28, crit=14, ta_line=0.29, ta_ahead=0.6, ta_init=-6,
    lat=16, tail_ahead=4, tail_pri=6, tail_low=2, dma_first={0: 1, 1: 1, 2: 1, 10: 1, 11: 1, 12: 1}, pre_items=1,
    touch={1: 3}, gran_after=8, cs_delay=8, prep_at=124, flag_delay=14, tail_flag_delay=10, kv_poll_at=300, kv_poll_wait=16,
    poll_chunk=16, out_flag="sc1", map2=0, rot2=1, slowfix=1, tail_ta=0.29, cp_poll_at=150, tail_mid=2, kv_ahead=3)

def cost(ins):
    k = ins.kind
    if k == "vmem": return OPT.c_vm4 if "x4" in ins.mn else OPT.c_vm2
    if k == "trans": return 2
    if k == "ds": return OPT.c_dsw if ins.mn.startswith("ds_write_b128") else 1
    if k == "nop": return ins.states
    if ins.mn == "s_barrier": return OPT.c_bar
    if k in ("salu", "ctl", "smem"): return OPT.c_s
    return 1

class Gate:
    def __init__(self, fn): self.fn = fn

PASSES = {
    "H": [("kv", 8, [[ACCA, ACCA+16], [ACCA+32, ACCA+48]], [0, 1], (128, 1024)),
          ("glu", 8, [[ACCB, ACCB+16], [ACCB+32, ACCB+48]], [2, 3], (384, 256)),
          ("half", 4, [[ACCA, ACCA+16]], [4], (64, 3072))],
    "Q": [("glu", 8, [[ACCA, ACCA+16], [ACCA+32, ACCA+48]], [0, 1], (384, 0)),
          ("q", 4, [[ACCB, ACCB+16]], [4], (128, 0)),
          ("glu", 8, [[ACCB+32, ACCB+48], [ACCA, ACCA+16]], [2, 3], (384, 128))]}
PITCH = {"kv": 3072, "q": 3072, "glu": 3584, "half": 3584}

class Gen:
    STREG = [100, 98, 18, 20, 22, 40, 42, 4, 16, 80, 82]
    def __init__(self):
        self.s = Stream(); self.s.costfn = cost
        self.tailblocks = []; self.log = []; self.ntr = 0
    def stamp(self, i):
        if not OPT.stamps: return
        r = self.STREG[i]
        self.s(f"{'s_memtime' if OPT.stamps == 'cyc' else 's_memrealtime'} s[{r}:{r+1}]")
    def tr(self):
        if not OPT.trace: return
        k = self.ntr; self.ntr += 1
        if 0 < k <= 128: self.s(f"v_writelane_b32 v{vTR + (k-1)//64}, s98, {(k-1) % 64}")
        self.s("s_memtime s[98:99]")
    def stamp_flush(self):
        s = self.s
        if not (OPT.stamps or OPT.trace): return
        s("s_waitcnt lgkmcnt(0)")
        s(f"s_lshl_b32 s{sT0}, s2, 2\ns_add_u32 s{sT0}, s{sT0}, s{sW}\ns_lshl_b32 s{sT0}, s{sT0}, {9 if OPT.trace else 8}\ns_add_u32 s{sT0}, s{sT0}, {STAMP - (0x40000 if OPT.trace else 0)}")
        if OPT.trace:
            s(f"v_lshlrev_b32 v64, 2, v{vL}")
            s(f"buffer_store_dword v{vTR}, v64, {srd(SS)}, s{sT0} offen\nbuffer_store_dword v{vTR+1}, v64, {srd(SS)}, s{sT0} offen offset:256")
            return
        s("s_mov_b64 exec, 1")
        for i, r in enumerate(self.STREG):
            s(f"v_mov_b32 v{64+i}, s{r}\nbuffer_store_dword v{64+i}, off, {srd(SS)}, s{sT0} offset:{4*i}")
    def check(self, pairs, reloads, name, t=vCK):
        s = self.s
        seq = []
        for i, (r, e) in enumerate(pairs):
            seq.append(f"v_xor_b32 v{t}, {e}, v{r}" if i == 0 else f"v_bitop3_b32 v{t}, v{t}, v{r}, {e} bitop3:0xf6")
        lr, lb = f"L_retry_{name}", f"L_back_{name}"
        for x in seq:
            s(x); yield
        s(f"v_cmp_ne_u32 vcc, 0, v{t}")
        s(f"s_cbranch_vccnz {lr}")
        s.label(lb)
        b = Stream()
        b.label(lr)
        b(f"s_mov_b32 s{sCNT}, {OPT.spin}")
        b.label(lr + "_loop")
        b("s_nop 4")
        for x in reloads: b(x)
        b("s_waitcnt vmcnt(0)")
        for x in seq: b(x)
        b(f"v_cmp_ne_u32 vcc, 0, v{t}")
        b(f"s_cbranch_vccz {lb}")
        b(f"s_sub_u32 s{sCNT}, s{sCNT}, 1\ns_cmp_lg_u32 s{sCNT}, 0")
        b(f"s_cbranch_scc1 {lr}_loop")
        b(f"s_branch {lb}")
        self.tailblocks.append(b.text())
        yield

    def prologue(self):
        s = self.s; T = TMP
        s("s_cmp_ge_u32 s2, 256")
        s("s_cbranch_scc1 L_exit")
        if OPT.diag == "fixed": s("s_memrealtime s[100:101]")
        self.stamp(0)
        s("s_load_dwordx16 s[4:19], s[0:1], 0")
        s("s_load_dwordx2 s[22:23], s[0:1], 72")
        s(f"v_lshrrev_b32 v{vDT}, 6, v0\nv_and_b32 v{vL}, 63, v0\nv_readfirstlane_b32 s{sW}, v{vDT}")
        s(f"s_lshr_b32 s{sT0}, s2, 3")
        if OPT.code_pf:
            s(f"s_getpc_b64 s[{sST}:{sST+1}]")
            s(f"s_lshl_b32 s{sT1}, s{sT0}, 2\ns_add_u32 s{sT1}, s{sT1}, s{sW}\ns_mul_i32 s{sT1}, s{sT1}, {OPT.pf_lines*128}")
            s(f"v_min_u32 v{vDT}, {OPT.pf_lines-1}, v{vL}\nv_lshl_add_u32 v{vDT}, v{vDT}, 7, s{sT1}")
            s(f"v_min_u32 v{vDT}, L_codeend-{NAME}-256, v{vDT}")
            s(f"global_load_dword v{vPFD}, v{vDT}, s[{sST}:{sST+1}]")
        s(f"s_lshl_b32 s{sMW}, s{sW}, 12")
        s(f"s_and_b32 s{sRB}, s2, 1\ns_lshl_b32 s{sRB}, s{sRB}, 3\ns_and_b32 s{sT1}, s{sT0}, 7\ns_or_b32 s{sRB}, s{sRB}, s{sT1}")
        s(f"s_and_b32 s{sJ}, s2, 6\ns_bfe_u32 s{sT1}, s{sT0}, 0x10003\ns_or_b32 s{sJ}, s{sJ}, s{sT1}")
        if OPT.rot1: s(f"s_xor_b32 s{sE1}, s{sT1}, s{sT0}\ns_and_b32 s{sE1}, s{sE1}, 1")
        else: s(f"s_mov_b32 s{sE1}, 0")
        s(f"v_lshrrev_b32 v{T}, 3, v{vL}\nv_and_b32 v{T+1}, 7, v{vL}\nv_lshrrev_b32 v{T+2}, 4, v{vL}")
        s(f"v_xor_b32 v{T+3}, v{T+1}, v{T+2}\nv_lshlrev_b32 v{T+3}, 4, v{T+3}\nv_lshl_add_u32 v{VX}, v{T}, 10, v{T+3}")
        s(f"v_xor_b32 v{VX+1}, 64, v{VX}\nv_add_u32 v{VX+1}, 7168, v{VX+1}\nv_add_u32 v{VX+2}, {2*7168}, v{VX}\nv_add_u32 v{VX+3}, {2*7168}, v{VX+1}")
        s(f"v_lshrrev_b32 v{T+4}, 5, v{vL}\nv_and_b32 v{T+5}, 31, v{vL}\nv_lshlrev_b32 v{T+5}, 4, v{T+5}\nv_lshl_add_u32 v{T+5}, v{T+4}, 10, v{T+5}")
        s(f"s_lshr_b32 s{sT2}, s{sT0}, 4\ns_lshl_b32 s{sT2}, s{sT2}, 3\ns_add_u32 s{sT2}, s{sT2}, s{sJ}\ns_lshl_b32 s{sT2}, s{sT2}, 2\ns_add_u32 s{sT2}, s{sT2}, s{sW}\ns_lshl_b32 s{sT2}, s{sT2}, 1")
        s(f"s_lshl_b32 s{sT3}, s{sRB}, 7\ns_add_u32 s{sT2}, s{sT2}, s{sT3}\ns_lshl_b32 s{sOF}, s{sT2}, 10")
        s(f"s_lshl_b32 s{sOX}, s{sW}, 5\ns_add_u32 s{sOX}, s{sOX}, s{sT3}\ns_lshl_b32 s{sOX}, s{sOX}, 10\ns_lshl_b32 s{sT3}, s{sE1}, 9\ns_add_u32 s{sOX}, s{sOX}, s{sT3}")
        s(f"s_lshl_b32 s{sOW}, s{sJ}, 7\ns_add_u32 s{sT3}, s{sOW}, 1024\ns_mul_i32 s{sOW}, s{sOW}, 3")
        s(f"s_movk_i32 s{sP}, 3072\ns_mov_b32 s{SW+2}, 1572864")
        s(f"s_cmp_ge_u32 s{sT0}, 16\ns_cselect_b32 s{sP}, 3584, s{sP}\ns_cselect_b32 s{sSH}, 0, 1024\ns_cselect_b32 s{sOW}, s{sOW}, s{sT3}\ns_cselect_b32 s{SW+2}, 1835008, s{SW+2}")
        s(f"s_lshl_b32 s{sT3}, s{sE1}, 4\ns_add_u32 s{sT3}, s{sT3}, s{sW}\ns_lshl_b32 s{sT3}, s{sT3}, 4\ns_mul_i32 s{sT3}, s{sT3}, s{sP}\ns_add_u32 s{sOW}, s{sOW}, s{sT3}")
        s(f"v_and_b32 v{T+2}, 1, v{T+2}\nv_lshlrev_b32 v{T+2}, 2, v{T+2}\nv_xor_b32 v{T+2}, v{T+2}, v{T+1}\nv_lshlrev_b32 v{T+2}, 4, v{T+2}")
        s(f"v_mad_u32_u24 v{VW}, v{T}, s{sP}, v{T+2}\ns_lshl_b32 s{sT3}, s{sP}, 3\ns_sub_u32 s{sT3}, s{sT3}, 1024")
        s(f"v_add_u32 v{VW+1}, s{sT3}, v{VW}\nv_xor_b32 v{VW+2}, 32, v{VW}\nv_add_u32 v{VW+2}, s{sSH}, v{VW+2}\nv_add_u32 v{VW+3}, s{sT3}, v{VW+2}")
        s(f"s_mov_b32 s{SX+2}, 0x200000\ns_mov_b32 s{SX+3}, 0x20000\ns_mov_b32 s{SW+3}, 0x20000\ns_mov_b32 s{SH+2}, s{SW+2}\ns_mov_b32 s{SH+3}, 0x20000")
        s(f"s_mov_b32 m0, s{sMW}\ns_cmp_ge_u32 s{sT0}, 16")
        s("s_waitcnt lgkmcnt(0)")
        s(f"s_mov_b64 s[{SX}:{SX+1}], s[4:5]")
        self.ld_st = [s(f"buffer_load_dwordx4 {v(T+8,4)}, v{T+5}, {srd(SX)}, s{sOF} offen"),
                      s(f"buffer_load_dwordx4 {v(T+12,4)}, v{T+5}, {srd(SX)}, s{sOF} offen offset:512")]
        for n in range(4): self.x0last = s(f"buffer_load_dwordx4 v{VX+n}, {srd(SX)}, s{sOX} offen offset:{n*1024} lds")
        s(f"s_cselect_b64 s[{SW}:{SW+1}], s[12:13], s[6:7]\ns_cselect_b64 s[{SH}:{SH+1}], s[14:15], s[6:7]")
        s(f"s_add_u32 m0, s{sMW}, {SLOT}")
        s(f"s_load_dword s{sEP}, s[22:23], {EPOCH}")
        for n in range(4):
            if n == 2: s(f"s_add_u32 m0, s{sMW}, {SLOT+2048}\ns_add_u32 s{sOX}, s{sOX}, 128")
            self.w0last = s(f"buffer_load_dwordx4 v{VW+n}, {srd(SW if n < 2 else SH)}, s{sOW} offen offset:{(n&1)*1024} lds")
        self.stamp(1)
        s(f"s_lshl_b32 s{sT3}, s{sP}, 6\ns_add_u32 s{sOW}, s{sOW}, s{sT3}\ns_mov_b32 s{sROT}, s{sE1}")
        s(f"s_lshl_b32 s{sT2}, s{sT2}, 3\ns_add_u32 s{sDT}, s{sT2}, {STATS}")
        s(f"v_lshlrev_b32 v{vL16}, 4, v{vL}\ns_lshr_b32 s{sTG}, s{sW}, 1\ns_and_b32 s{sCH}, s{sW}, 1")
        self.piece()
        if OPT.slowfix:
            s(f"s_lshl_b32 s{sE2}, s{sW}, 8\ns_add_u32 s{sE2}, s{sE2}, s2\ns_lshr_b32 s{sR4}, s16, 7\ns_sub_u32 s{sR4}, 3, s{sR4}\ns_and_b32 s{sR4}, s{sR4}, 7")
            s(f"s_sub_u32 s{sT1}, s{sE2}, 224\ns_cmp_lt_u32 s{sE2}, 224\ns_cselect_b64 s[{SC}:{SC+1}], s[16:17], s[8:9]\ns_cselect_b32 s{sT1}, s{sE2}, s{sT1}\ns_mov_b32 s{SC+2}, 524288\ns_cselect_b32 s{SC+2}, 1835008, s{SC+2}")
            s(f"s_lshl_b32 s{sT1}, s{sT1}, 13\ns_lshl_b32 s{sT3}, s{sR4}, 7\ns_add_u32 s{sT1}, s{sT1}, s{sT3}\nv_lshl_add_u32 v{vDW}, v{TMP}, 10, v{TMP+2}")
            self.ld_cp = s(f"buffer_load_dwordx4 {v(TMP+20,4)}, v{vDW}, {srd(SC)}, s{sT1} offen")
        for n, p, size in ((SQ, 6, 1572864), (SG, 12, 1835008), (SU, 14, 1835008), (SS, 22, SMALL), (SO, 18, 0x200000)):
            s(f"s_mov_b64 s[{n}:{n+1}], s[{p}:{p+1}]\ns_mov_b32 s{n+2}, {size}\ns_mov_b32 s{n+3}, 0x20000")
        self.common_setup()
        s(f"s_cmp_ge_u32 s{sT0}, 16")
        s("s_cbranch_scc1 L_typeQ")

    def piece(self):
        s = self.s
        lc, A, B, Cc, Dd = sHB, sOW2, sFA, sHA, sPO
        s(f"s_and_b32 s{sT1}, s2, 1\ns_lshl_b32 s{sT1}, s{sT1}, 5\ns_add_u32 s{sT1}, s{sT1}, s{sT0}")
        s(f"s_mul_i32 s{lc}, s{sT1}, 43691\ns_lshr_b32 s{lc}, s{lc}, 17")
        s(f"s_mul_i32 s{sPS}, s{lc}, 3\ns_sub_u32 s{sT1}, s{sT1}, s{sPS}")
        s(f"s_lshr_b32 s{A}, s{lc}, 1\ns_add_u32 s{A}, s{A}, 1\ns_cmp_eq_u32 s{A}, 3\ns_cselect_b32 s{A}, 0, s{A}\ns_lshl_b32 s{A}, s{A}, 3")
        s(f"s_and_b32 s{B}, s2, 6\ns_add_u32 s{A}, s{A}, s{B}\ns_and_b32 s{Cc}, s{lc}, 1\ns_add_u32 s{A}, s{A}, s{Cc}")
        s(f"s_cmp_ge_u32 s{lc}, 13\ns_cselect_b32 s{Cc}, 13, 6\ns_cselect_b32 s{sPS}, 52, 24\ns_cselect_b64 s[{SC}:{SC+1}], s[14:15], s[12:13]\ns_sub_u32 s{Cc}, s{lc}, s{Cc}")
        s(f"s_mul_i32 s{Dd}, s{B}, 3\ns_add_u32 s{Dd}, s{Dd}, s{Cc}\ns_lshr_b32 s{B}, s{B}, 1\ns_add_u32 s{B}, s{B}, 24")
        s(f"s_cmp_eq_u32 s{Cc}, 6\ns_cselect_b32 s{B}, s{B}, s{Dd}\ns_add_u32 s{Cc}, s{sPS}, s{B}")
        s(f"s_cmp_lt_u32 s{lc}, 6\ns_mov_b32 s{SC+2}, 1835008\ns_cselect_b32 s{SC+2}, 1572864, s{SC+2}\ns_cselect_b64 s[{SC}:{SC+1}], s[6:7], s[{SC}:{SC+1}]")
        s(f"s_cselect_b32 s{Cc}, s{A}, s{Cc}\ns_cselect_b32 s{B}, s{A}, s{B}\ns_movk_i32 s{A}, 3584\ns_cselect_b32 s{A}, 3072, s{A}\ns_mov_b32 s{SC+3}, 0x20000")
        s(f"s_lshl_b32 s{sPP}, s{A}, 3")
        s(f"s_lshl_b32 s{Dd}, s{sT1}, 2\ns_add_u32 s{Dd}, s{Dd}, s{sW}\ns_mul_i32 s{Dd}, s{Dd}, 6\ns_mul_i32 s{sPO}, s{Dd}, s{sPP}")
        s(f"s_lshl_b32 s{B}, s{B}, 7\ns_add_u32 s{sPO}, s{sPO}, s{B}")
        s(f"s_lshl_b32 s{sPS}, s{Cc}, 11\ns_lshl_b32 s{sT1}, s{sT1}, 9\ns_add_u32 s{sPS}, s{sPS}, s{sT1}\ns_add_u32 s{sPS}, s{sPS}, {COLSUM}")
        s(f"s_cmp_lg_u32 s{sW}, 0\ns_cselect_b32 s{sPS}, {OOB}, s{sPS}")
        s(f"s_cmp_ge_u32 s{lc}, 20\ns_cselect_b32 s{sPS}, {OOB}, s{sPS}\ns_cselect_b32 s{sPO}, {OOB}, s{sPO}")
        s(f"v_lshlrev_b32 v{vSV}, 4, v{TMP+1}\nv_mad_u32_u24 v{vSV}, v{TMP}, s{A}, v{vSV}")
        self.ld_cs = []
        for n in range(6):
            self.ld_cs.append(s(f"buffer_load_dwordx4 {v(CS+4*n,4)}, v{vSV}, {srd(SC)}, s{sPO} offen"))
            if n < 5: s(f"s_add_u32 s{sPO}, s{sPO}, s{sPP}")

    def rdpattern(self, kind, D):
        T, U = vBT, vDT
        o = [f"v_bfe_u32 v{T}, v{vL}, 2, 2", f"v_lshrrev_b32 v{U}, 5, v{vL}", f"v_lshl_add_u32 v{T}, v{U}, {2 if kind == 'w2' else 3}, v{T}"]
        if kind == "half":
            o += [f"v_lshlrev_b32 v{D}, 6, v{T}", f"v_bfe_u32 v{T}, v{vL}, 4, 1", f"v_lshl_add_u32 v{D}, v{T}, 11, v{D}",
                  f"v_xor_b32 v{T}, s{sCH}, v{T}", f"v_lshl_add_u32 v{D}, v{T}, 5, v{D}"]
        else:
            o += [f"v_lshlrev_b32 v{D}, 7, v{T}", f"v_and_b32 v{T}, 2, v{T}", f"v_bfe_u32 v{U}, v{vL}, 4, 1", f"v_xor_b32 v{T}, v{T}, v{U}"]
            if kind == "glu": o += [f"v_lshl_add_u32 v{D}, v{U}, 11, v{D}"]
            if kind != "w2": o += [f"s_lshl_b32 s{sBT}, s{sCH}, 1", f"v_xor_b32 v{T}, s{sBT}, v{T}"]
            o += [f"v_lshl_add_u32 v{D}, v{T}, 5, v{D}"]
        o += [f"v_and_b32 v{T}, 3, v{vL}", f"v_lshl_add_u32 v{D}, v{T}, 3, v{D}"]
        if kind == "w2": o += [f"v_add_u32 v{D}, s{sMW}, v{D}"]
        return o

    def common_setup(self):
        s = self.s; T = vLT
        L = [f"s_cmp_eq_u32 s{sW}, 0", f"s_cselect_b64 s[{SW}:{SW+1}], s[8:9], s[16:17]", f"s_mov_b32 s{SW+2}, 1835008", f"s_cselect_b32 s{SW+2}, 524288, s{SW+2}",
             f"s_cselect_b32 s{sT2}, 1, s{sW}", f"s_cselect_b64 s[{sW0X}:{sW0X+1}], -1, 1", f"s_sub_u32 s{sT2}, s{sT2}, 1", f"s_mul_i32 s{sT2}, s{sT2}, 19",
             f"s_add_u32 s{SH}, s22, {H_OFF}", f"s_addc_u32 s{SH+1}, s23, 0", f"s_mov_b32 s{SH+2}, {H_BYTES}", f"s_mov_b32 s{sLN2}, {hex(LN2)}",
             *([f"s_and_b32 s{sTB}, s2, 7", f"s_lshl_b32 s{sTB}, s{sTB}, 2", f"s_and_b32 s{sT3}, s{sT0}, 3", f"s_or_b32 s{sTB}, s{sTB}, s{sT3}", f"s_lshr_b32 s{sCT}, s2, 5"] if OPT.map2 == 0 else
               [f"s_and_b32 s{sTB}, s2, 6", f"s_lshl_b32 s{sTB}, s{sTB}, 2", f"s_and_b32 s{sT3}, s{sT0}, 7", f"s_or_b32 s{sTB}, s{sTB}, s{sT3}",
                f"s_and_b32 s{sCT}, s2, 1", f"s_lshl_b32 s{sCT}, s{sCT}, 2", f"s_lshr_b32 s{sT3}, s{sT0}, 3", f"s_or_b32 s{sCT}, s{sCT}, s{sT3}"]),
             f"s_cmp_eq_u32 s{sW}, 3", f"s_cselect_b32 s{sT1}, 18, 19", f"s_cselect_b32 s{sO18}, {OOB}, 0",
             f"s_cmp_eq_u32 s{sW}, 0", f"s_cselect_b32 s{sT1}, 16, s{sT1}", f"s_cselect_b32 s{sO16}, {OOB}, 0", f"s_cselect_b32 s{sHA}, 56, s{sT2}",
             *([f"s_lshr_b32 s{sT3}, s{sT0}, 2", f"s_xor_b32 s{sT3}, s{sT3}, s{sT0}", f"s_and_b32 s{sT3}, s{sT3}, 1"] if OPT.rot2 else [f"s_mov_b32 s{sT3}, 0"]),
             f"s_mul_i32 s{sWR}, s{sT1}, s{sT3}", f"s_sub_u32 s{sT1}, s{sT1}, 9", f"s_mul_i32 s{sT1}, s{sT1}, s{sT3}",
             f"s_lshl_b32 s{sHR}, s{sWR}, 12", f"s_add_u32 s{sHA}, s{sHA}, s{sT1}", f"s_mov_b32 s{sHB}, s{sHA}", f"s_lshl_b32 s{sHA}, s{sHA}, 12",
             f"s_mul_i32 s{sT3}, s{sTB}, {TBB}", f"s_add_u32 s{sHA}, s{sHA}, s{sT3}",
             f"s_add_u32 s{sOW2}, s{sT2}, s{sT1}", f"s_lshl_b32 s{sOW2}, s{sOW2}, 15", f"s_lshl_b32 s{sT3}, s{sCT}, 7", f"s_add_u32 s{sOW2}, s{sOW2}, s{sT3}",
             f"s_mov_b32 s{sC2}, 32768", f"s_movk_i32 s{sH36}, 7168",
             *([f"s_lshl_b32 s{sHB}, s{sHB}, 12", f"s_add_u32 s{sP}, s22, {W2C}", f"s_addc_u32 s{sP+1}, s23, 0",
                f"s_cmp_eq_u32 s{sCT}, s{sR4}", f"s_cselect_b64 s[{SC}:{SC+1}], s[{sP}:{sP+1}], s[{SW}:{SW+1}]", f"s_cselect_b32 s{SC+2}, 294912, s{SW+2}",
                f"s_cselect_b32 s{sOW2}, s{sHB}, s{sOW2}", f"s_cselect_b32 s{sC2}, 4096, s{sC2}", f"s_cselect_b32 s{sH36}, 0, s{sH36}", f"s_cselect_b64 vcc, -1, 0", f"s_cselect_b32 s{sR4}, -1, 0",
                f"v_cndmask_b32 v{vDW}, v{vDW}, v{vL16}, vcc",
                f"s_lshl_b32 s{sCPO}, s{sE2}, 10", f"s_add_u32 s{sCPO}, s{sCPO}, {W2C}", f"s_cmp_lt_u32 s{sE2}, 288", f"s_cselect_b64 s[{sCPX}:{sCPX+1}], -1, 1", f"s_cselect_b32 s{sCPO}, s{sCPO}, {OOB}",
                f"s_cselect_b32 s{sE2}, s{sE2}, {OOB//4}", f"s_lshl_b32 s{sE2}, s{sE2}, 2", f"s_add_u32 s{sE2}, s{sE2}, {CPFLAG}"]
               if OPT.slowfix else [f"s_mov_b64 s[{SC}:{SC+1}], s[{SW}:{SW+1}]", f"s_mov_b32 s{SC+2}, s{SW+2}", f"v_lshl_add_u32 v{vDW}, v{TMP}, 10, v{TMP+2}"]),
             f"s_mul_i32 s{sWR}, s{sWR}, s{sC2}",
             f"s_lshl_b32 s{sFA}, s{sTB}, 8", f"s_add_u32 s{sT2}, s{sFA}, {FLAGA+128}", f"s_add_u32 s{sFA}, s{sFA}, {FLAGB}",
             f"s_cmp_eq_u32 s{sW}, 0", f"s_cselect_b32 s{sFA}, s{sT2}, s{sFA}",
             f"s_lshl_b32 s{sT1}, s{sRB}, 1", f"s_add_u32 s{sT1}, s{sT1}, s{sTG}", f"s_mul_i32 s{sOH}, s{sT1}, {TBB}",
             f"s_lshl_b32 s{sOF}, s{sT1}, 5", f"s_lshl_b32 s{sT2}, s{sJ}, 1", f"s_add_u32 s{sT2}, s{sT2}, s{sCH}", f"s_add_u32 s{sOF}, s{sOF}, s{sT2}",
             f"s_and_b32 s{sT3}, s{sT0}, 16", f"s_add_u32 s{sOF}, s{sOF}, s{sT3}", f"s_lshl_b32 s{sOF}, s{sOF}, 3",
             f"s_lshl_b32 s{sT2}, s{sT2}, 1", f"s_add_u32 s{sKV}, s{sT2}, s{sTG}",
             f"v_lshrrev_b32 v{vE3}, 5, v{vL}", f"v_and_b32 v{vQ1}, 31, v{vL}", f"v_lshlrev_b32 v{vQ1}, 3, v{vQ1}", f"v_lshl_add_u32 v{vQ0}, v{vE3}, 10, v{vQ1}",
             f"v_and_b32 v{vG1}, 0x78, v{vQ1}", f"v_bfe_u32 v{T}, v{vL}, 4, 1", f"v_mul_u32_u24 v{T}, {28*2048}, v{T}", f"v_add_u32 v{vG1}, v{vG1}, v{T}", f"v_lshl_add_u32 v{vG0}, v{vE3}, 10, v{vG1}",
             f"v_lshl_add_u32 v{vG1}, v{vE3}, 30, v{vG1}", f"s_lshl_b32 s{sT1}, s{sT1}, 9", f"s_add_u32 s{sT1}, s{sT1}, {STATS}", f"v_add_u32 v{vSV}, s{sT1}, v{vQ1}",
             f"v_lshl_add_u32 v{vQ1}, v{vE3}, 30, v{vQ1}", f"v_add_u32 v{vE3}, -1, v{vE3}"]
        L += self.rdpattern("glu", vRG) + self.rdpattern("w2", vR2)
        L += [f"v_and_b32 v{XA}, 31, v{vL}", f"s_lshl_b32 s{sT3}, s{sTG}, 6", f"v_add_u32 v{XA}, s{sT3}, v{XA}", f"v_lshlrev_b32 v{XA}, 7, v{XA}",
              f"v_lshrrev_b32 v{T}, 5, v{vL}", f"v_bfe_u32 v{XA+1}, v{vL}, 1, 3", f"v_xor_b32 v{T}, v{T}, v{XA+1}", f"v_lshl_add_u32 v{XA}, v{T}, 4, v{XA}"]
        L += [f"v_xor_b32 v{XA+q}, {32*q}, v{XA}" for q in (1, 2, 3)]
        if OPT.touch:
            U = MF
            def lim(r, n): return [f"v_cmp_gt_u32 vcc, {n}, v{vL}", f"v_cndmask_b32 v{r}, v{T+1}, v{r}, vcc"]
            L += [f"v_mov_b32 v{T+1}, {OOB}", f"s_lshl_b32 s{sT2}, s2, 2", f"s_add_u32 s{sT2}, s{sT2}, s{sW}"]
            if 1 in OPT.touch:
                L += [f"s_mul_i32 s{sT3}, s2, 3", f"s_add_u32 s{sT3}, s{sT3}, s{sW}", f"s_sub_u32 s{sT3}, s{sT3}, 1", f"s_mul_i32 s{sT3}, s{sT3}, 19", f"s_lshl_b32 s{sBT}, s2, 4",
                      f"s_cmp_eq_u32 s{sW}, 0", f"s_cselect_b32 s{sT3}, s{sBT}, s{sT3}", f"s_cselect_b32 s{sBT}, 16, 19",
                      f"v_add_u32 v{U}, s{sT3}, v{vL}", f"v_lshlrev_b32 v{U}, 7, v{U}"] + lim(U, f"s{sBT}")
            if 2 in OPT.touch:
                L += [f"v_lshl_add_u32 v{U+1}, s{sT2}, 2, v{vL}", f"v_lshrrev_b32 v{T}, 3, v{U+1}", f"v_mul_u32_u24 v{T}, 3072, v{T}", f"v_and_b32 v{U+1}, 7, v{U+1}", f"v_lshl_add_u32 v{U+1}, v{U+1}, 7, v{T}"] + lim(U+1, 4)
            if 3 in OPT.touch:
                L += [f"v_lshl_add_u32 v{U+2}, s{sT2}, 1, v{vL}", f"v_lshrrev_b32 v{T}, 2, v{U+2}", f"v_mul_u32_u24 v{T}, 3584, v{T}", f"v_and_b32 v{U+2}, 3, v{U+2}", f"v_lshl_add_u32 v{U+2}, v{U+2}, 7, v{T}", f"v_add_u32 v{U+2}, 3072, v{U+2}"] + lim(U+2, 2)
            if 4 in OPT.touch:
                L += [f"v_lshl_add_u32 v{U+3}, s{sT2}, 3, v{vL}", f"v_lshrrev_b32 v{T}, 4, v{U+3}", f"v_mul_u32_u24 v{T}, 3584, v{T}", f"v_bfe_u32 v{T+2}, v{U+3}, 1, 3", f"v_mul_u32_u24 v{T+2}, 384, v{T+2}", f"v_add_u32 v{T}, v{T}, v{T+2}",
                      f"v_and_b32 v{U+3}, 1, v{U+3}", f"v_lshl_add_u32 v{U+3}, v{U+3}, 7, v{T}", f"v_add_u32 v{U+3}, 128, v{U+3}"] + lim(U+3, 8)
        for t in L: s(t)

    def type_setup(self, typ):
        s = self.s; T = vLT
        if typ == "Q":
            L = [f"s_mul_i32 s{sCS}, s{sJ}, {3*2048}", f"s_lshl_b32 s{sT1}, s{sCH}, 8", f"s_add_u32 s{sCS}, s{sCS}, s{sT1}", f"s_add_u32 s{sCS}, s{sCS}, {COLSUM+24*2048}",
                 f"s_add_u32 s{sCS+1}, s{sCS}, 128", f"s_add_u32 s{sCS+2}, s{sCS}, 2048", f"s_add_u32 s{sCS+3}, s{sCS}, {2048+128}",
                 f"s_lshl_b32 s{sCS+4}, s{sJ}, 11", f"s_add_u32 s{sCS+4}, s{sCS+4}, s{sT1}", f"s_add_u32 s{sCS+4}, s{sCS+4}, {COLSUM}",
                 f"s_lshl_b32 s{sKF}, s{sKV}, 7", f"s_add_u32 s{sKF}, s{sKF}, {KVFLAG}", f"s_mul_i32 s{sKV}, s{sKV}, {16*KVS}", f"s_add_u32 s{sKV}, s{sKV}, {KV}",
                 f"s_or_b32 s{sT3}, s{sRB}, s{sJ}", f"s_or_b32 s{sT3}, s{sT3}, s{sW}", f"s_cmp_eq_u32 s{sT3}, 0", f"s_cselect_b32 s{sEO}, {EPOCH}, {OOB}",
                 f"v_mov_b32 v{vD3}, v{VW}", f"v_mul_u32_u24 v{vD2}, 3072, v{TMP}", f"v_add_u32 v{vD2}, v{vD2}, v{TMP+2}",
                 f"v_add_u32 v{WA}, {SLOT}, v{vRG}", f"v_xor_b32 v{WA+1}, 32, v{WA}"]
            L += self.rdpattern("q", vRS)
            L += [f"v_mov_b32 v{KF}, 0x3f80", f"v_and_b32 v{T}, 1, v{vL}", f"v_lshlrev_b32 v{T}, 4, v{T}", f"v_lshlrev_b32 v{T}, v{T}, v{KF}",
                  f"v_lshrrev_b32 v{KF}, 3, v{vL}", f"v_xor_b32 v{KF}, v{KF}, v{vL}", f"v_and_b32 v{KF}, 4, v{KF}", f"v_and_b32 v{KF+1}, 16, v{vL}", f"v_or_b32 v{KF}, v{KF}, v{KF+1}",
                  f"v_bfe_u32 v{KF+1}, v{vL}, 1, 1", f"v_or_b32 v{KF}, v{KF}, v{KF+1}", f"v_bfe_u32 v{KF+1}, v{vL}, 3, 1", f"v_lshl_or_b32 v{KF+3}, v{KF+1}, 1, v{KF}"]
            for i in range(4): L += [f"v_cmp_eq_u32 vcc, {i}, v{KF+3}", f"v_cndmask_b32 v{KF+i}, 0, v{T}, vcc"]
            pats = ["g", "g", "g", "g", "q"]
        else:
            L = [f"s_lshl_b32 s{sCS}, s{sJ}, 11", f"s_lshl_b32 s{sT1}, s{sCH}, 8", f"s_add_u32 s{sCS}, s{sCS}, s{sT1}", f"s_add_u32 s{sCS+1}, s{sCS}, {COLSUM+16*2048}", f"s_add_u32 s{sCS}, s{sCS}, {COLSUM+8*2048}",
                 f"s_mul_i32 s{sCS+2}, s{sJ}, {3*2048}", f"s_add_u32 s{sCS+2}, s{sCS+2}, s{sT1}", f"s_add_u32 s{sCS+2}, s{sCS+2}, {COLSUM+26*2048}", f"s_add_u32 s{sCS+3}, s{sCS+2}, 128",
                 f"s_lshr_b32 s{sCS+4}, s{sJ}, 1", f"s_lshl_b32 s{sCS+4}, s{sCS+4}, 11", f"s_and_b32 s{sT1}, s{sJ}, 1", f"s_lshl_b32 s{sT1}, s{sT1}, 1", f"s_add_u32 s{sT1}, s{sT1}, s{sCH}", f"s_lshl_b32 s{sT1}, s{sT1}, 7",
                 f"s_add_u32 s{sCS+4}, s{sCS+4}, s{sT1}", f"s_add_u32 s{sCS+4}, s{sCS+4}, {COLSUM+48*2048}",
                 f"s_lshl_b32 s{sKV}, s{sKV}, 4", f"s_add_u32 s{sKV}, s{sKV}, s{sRB}", f"s_lshl_b32 s{sKF}, s{sKV}, 3", f"s_add_u32 s{sKF}, s{sKF}, {KVFLAG}",
                 f"s_mul_i32 s{sKV}, s{sKV}, {KVS}", f"s_add_u32 s{sKV}, s{sKV}, {KV}",
                 f"v_mul_u32_u24 v{vD2}, 3584, v{TMP}", f"v_add_u32 v{vD2}, v{vD2}, v{TMP+2}",
                 f"v_and_b32 v{T}, 3, v{vL}", f"v_lshlrev_b32 v{T}, 4, v{T}", f"v_lshrrev_b32 v{vD3}, 2, v{vL}", f"v_mul_u32_u24 v{vD3}, 3584, v{vD3}", f"v_add_u32 v{vD3}, v{vD3}, v{T}",
                 f"s_mov_b32 s{sMK}, 0xffff0000", f"s_mov_b32 s{sMK+1}, 0xffff0000"]
            L += self.rdpattern("kv", WA) + [f"v_add_u32 v{WA}, {SLOT}, v{WA}", f"v_xor_b32 v{WA+1}, 32, v{WA}", f"v_add_u32 v{WA+1}, 2048, v{WA+1}"]
            L += self.rdpattern("half", vRS)
            L += [f"v_mov_b32 v{KF+i}, 0x3f803f80" for i in range(4)]
            pats = ["q", "q", "g", "g", "g"]
        for t in L: s(t)
        gl = [f"buffer_load_dwordx2 {v(ST,2)}, v{vSV}, {srd(SS)}, 0 offen sc1", f"buffer_load_dwordx2 {v(ST+2,2)}, v{vSV}, {srd(SS)}, 0 offen offset:256 sc1"]
        for u, p in enumerate(pats):
            r0, r1 = (vG0, vG1) if p == "g" else (vQ0, vQ1)
            gl += [f"buffer_load_dwordx2 {v(CS+4*u,2)}, v{r0}, {srd(SS)}, s{sCS+u} offen sc1", f"buffer_load_dwordx2 {v(CS+4*u+2,2)}, v{r1}, {srd(SS)}, s{sCS+u} offen offset:512 sc1"]
        self.gran_loads = gl

    def stats_compute(self):
        s = self.s; T = TMP
        s(f"v_mov_b32 v{T}, 0\nv_mov_b32 v{T+1}, 0\nv_mov_b32 v{T+2}, 0x3f803f80")
        s.wait(vm=self.ld_st[1])
        self.stamp(2)
        for i in range(8): s(f"v_dot2c_f32_bf16 v{T}, v{T+8+i}, v{T+2}\nv_dot2c_f32_bf16 v{T+1}, v{T+8+i}, v{T+8+i}")
        for d in ("row_shr:1", "row_shr:2", "row_shr:4", "row_shr:8", "row_bcast:15 row_mask:0xa"):
            for r in (T, T+1):
                s(f"v_add_f32 v{r}, v{r}, v{r} {d}" + ("" if "mask" in d else " row_mask:0xf") + " bank_mask:0xf" + (" bound_ctrl:1" if "shr" in d else ""))
        s(f"v_mul_f32 v{T}, {hex(f2u(1/512))}, v{T}\nv_mul_f32 v{T+1}, {hex(f2u(1/512))}, v{T+1}")
        s(f"v_fma_f32 v{T+1}, -v{T}, v{T}, v{T+1}\nv_max_f32 v{T+1}, 0, v{T+1}")
        s(f"v_cvt_pk_bf16_f32 v{T+2}, v{T}, v{T+1}")
        s(f"v_and_b32 v{T+1}, 0xffff0000, v{T+2}\nv_add_f32 v{T+1}, {hex(f2u(1e-5))}, v{T+1}")
        s(f"v_cvt_pk_bf16_f32 v{T+1}, v{T+1}, v{T+1}\nv_and_b32 v{T+1}, 0xffff0000, v{T+1}\nv_sqrt_f32 v{T+1}, v{T+1}")
        s(f"s_mov_b32 s{sT3}, 0xffff\nv_cvt_pk_bf16_f32 v{T+1}, v{T+1}, v{T+1}")
        s(f"v_lshlrev_b32 v{T+4}, 3, v{T+4}\nv_bfi_b32 v{T+2}, s{sT3}, v{T+2}, v{T+1}")
        s("s_waitcnt lgkmcnt(0)")
        s(f"s_mul_i32 s{sEP}, s{sEP}, 0x9E3779B1\ns_add_u32 s{sEP}, s{sEP}, 0x7F4A7C15\ns_and_b32 s{sTAG}, s{sEP}, 0xBFFFBFFF")
        s(f"v_mov_b32 v{T+3}, s{sTAG}\nv_and_b32 v{vE3}, s{sTAG}, v{vE3}")
        s("s_mov_b32 exec_lo, 0x80000000\ns_mov_b32 exec_hi, 0x80000000")
        s(f"buffer_store_dwordx2 {v(T+2,2)}, v{T+4}, {srd(SS)}, s{sDT} offen sc1")
        s("s_mov_b64 exec, -1")
    def cp_store(self):
        s = self.s
        if not OPT.slowfix: return
        s.wait(vm=self.ld_cp)
        s(f"s_mov_b64 exec, s[{sCPX}:{sCPX+1}]")
        self.st_cp = s(f"buffer_store_dwordx4 {v(TMP+20,4)}, v{vL16}, {srd(SS)}, s{sCPO} offen sc1"); self.st_cp.lines = 2
        s("s_mov_b64 exec, -1")
    def cp_poll(self):
        s = self.s
        yield Gate(lambda: self.prep_done and self.slotno >= OPT.cp_poll_at)
        ad, ex = vQ0, vQ1
        for x in (f"s_cmp_eq_u32 s{sW}, 0\ns_cselect_b32 s{sT3}, 31, 37\ns_cselect_b32 s{sBT}, 4, s{sW}", f"s_mul_i32 s{sBT}, s{sBT}, 304", f"s_add_u32 s{sBT}, s{sBT}, {CPFLAG-304}",
                  f"s_cmp_eq_u32 s{sW}, 0\ns_cselect_b32 s{sBT}, {CPFLAG+896}, s{sBT}", f"s_cmp_eq_u32 s{sW}, 3\ns_cselect_b32 s{sT3}, 35, s{sT3}",
                  f"v_min_u32 v{ad}, s{sT3}, v{vL}", f"v_lshlrev_b32 v{ad}, 3, v{ad}", f"s_andn2_b32 s{sT3}, {OOB}, s{sR4}", f"s_or_b32 s{sBT}, s{sBT}, s{sT3}",
                  f"s_and_b32 s{sT3}, s{sTAG}, s{sR4}", f"v_mov_b32 v{ex}, s{sT3}"): s(x); yield
        txt = f"buffer_load_dwordx2 {v(VX,2)}, v{ad}, {srd(SS)}, s{sBT} offen sc1"
        ld = s(txt); ld.lines = 1; yield
        yield self.after_slots(OPT.kv_poll_wait)
        s.wait(vm=ld); yield
        yield from self.check([(VX, f"v{ex}"), (VX+1, f"v{ex}")], [txt], "cp" + self.typ)
        self.cp_ok = True

    def colsum_task(self):
        s = self.s; R0 = CS; A = TMP+24; T = TMP
        yield self.after_slots(OPT.cs_delay)
        for n in range(6):
            if n % 2 == 0: s.wait(vm=self.ld_cs[n+1]); yield
            for r in range(4):
                R = R0+4*n+r
                if n == 0:
                    s(f"v_lshlrev_b32 v{A+2*r}, 16, v{R}"); yield
                    s(f"v_and_b32 v{A+2*r+1}, 0xffff0000, v{R}"); yield
                else:
                    s(f"v_lshlrev_b32 v{T+r}, 16, v{R}"); yield
                    s(f"v_and_b32 v{R}, 0xffff0000, v{R}"); yield
                    s(f"v_add_f32 v{A+2*r}, v{A+2*r}, v{T+r}"); yield
                    s(f"v_add_f32 v{A+2*r+1}, v{A+2*r+1}, v{R}"); yield
        self.cs_consumed = True
        L = [f"v_permlane32_swap_b32 v{A+e}, v{A+e+4}" for e in range(4)]
        L += [f"v_and_b32 v{T}, 7, v{vL}", f"v_lshlrev_b32 v{T}, 3, v{T}"] + [f"v_add_f32 v{A+e}, v{A+e}, v{A+e+4}" for e in range(4)]
        L += [f"v_lshrrev_b32 v{T+1}, 3, v{vL}", f"v_or_b32 v{T}, v{T}, v{T+1}"] + [f"v_permlane16_swap_b32 v{A+e}, v{A+e+2}" for e in range(2)]
        L += [f"s_lshl_b32 s{sPP}, s{sW}, 2", f"s_add_u32 s{sPP}, s{sPP}, {XTRA+2048}"] + [f"v_add_f32 v{A+e}, v{A+e}, v{A+e+2}" for e in range(2)]
        L += [f"v_lshl_add_u32 v{T}, v{T}, 4, s{sPP}", f"v_add_u32 v{T+1}, {XTRA+2048}, v{vL16}",
              f"v_add_f32 v{A+2}, v{A}, v{A} row_ror:8 row_mask:0xf bank_mask:0x3", f"v_lshrrev_b32 v{T+8}, 1, v{vL16}", f"v_mov_b32 v{T+9}, s{sTAG}",
              f"v_add_f32 v{A+2}, v{A+1}, v{A+1} row_ror:8 row_mask:0xf bank_mask:0xc"]
        for x in L: s(x); yield
        self.pend_w = s(f"ds_write_b32 v{T}, v{A+2}"); yield
        yield self.after_bar()
        rd = s(f"ds_read_b128 {v(T+4,4)}, v{T+1}"); yield
        yield self.after_slots(3)
        s.wait(lg=rd); yield
        for x in (f"v_add_f32 v{T+4}, v{T+4}, v{T+5}", f"v_add_f32 v{T+6}, v{T+6}, v{T+7}", f"v_mov_b32 v{T+7}, v{T+9}", f"v_add_f32 v{T+4}, v{T+4}, v{T+6}",
                  f"v_cvt_pk_bf16_f32 v{T+5}, v{T+4}, v{T+4}", f"v_lshlrev_b32 v{T+5}, 16, v{T+5}", f"v_sub_f32 v{T+5}, v{T+4}, v{T+5}",
                  f"v_cvt_pk_bf16_f32 v{T+6}, v{T+4}, v{T+5}"): s(x); yield
        s(f"s_mov_b64 exec, s[{sW0X}:{sW0X+1}]")
        s(f"buffer_store_dwordx2 {v(T+6,2)}, v{T+8}, {srd(SS)}, s{sPS} offen sc1")
        if OPT.slowfix:
            s.wait(vm=self.st_cp)
            s("s_mov_b64 exec, 1")
            s(f"buffer_store_dword v{T+7}, off, {srd(SS)}, s{sE2} sc1").lines = 0
        s("s_mov_b64 exec, -1"); yield

    def pass_of(self, st):
        b = 0
        for p, P in enumerate(PASSES[self.typ]):
            if st < b + P[1]: return p, st - b
            b += P[1]
        return None, None
    def items_of(self, st):
        if st < 0 or st >= 20: return []
        return [("x", st), ("w", st)] if st < 8 else [("w", st)]

    def dma_task(self):
        s = self.s; typ = self.typ
        items = []
        for st in range(1, 20):
            items += self.items_of(st)
            for key, at in OPT.touch.items():
                if max(at, 1) == st: items.append(("touch", key))
            if st == OPT.gran_after: items.append(("gran", 0))
        items += [("v2", c) for c in range(19)]
        for kind, st in items:
            self.cur_item = (kind, st)
            if kind == "gran":
                yield Gate(lambda: self.cs_consumed)
                for t in self.gran_loads:
                    self.ld_gran = s(t); self.ld_gran.lines = 4 if (" s" in t.split(",")[3] and "offset" not in t) else 2; yield "d"
                self.gran_issued = True; self.log.append(f"gran@{self.slotno}")
                continue
            if kind == "touch":
                for sr_ in {1: [SW], 2: [SQ], 3: [SG, SU], 4: [SG, SU]}[st]:
                    i_ = s(f"buffer_load_dword v{MF+4}, v{MF-1+st}, {srd(sr_)}, 0 offen"); i_.lines = {1: 18, 2: 4, 3: 2, 4: 8}[st]; yield "d"
                continue
            pre = []
            if kind == "w":
                p, ls = self.pass_of(st); pk, ns, _, _, (cm, ca) = PASSES[typ][p]; P = PITCH[pk]
                rows = 512//ns
                if ls == 0:
                    base = vD2 if p == 1 else vD3
                    if pk == "q": pre += [f"v_mov_b32 v{VW}, v{base}"] + [f"v_add_u32 v{VW+n}, {n*(8*P-1024)}, v{base}" for n in (1, 2, 3)]
                    else:
                        d = (16 if pk == "half" else 8)*P - 1024
                        pre += [f"v_mov_b32 v{VW}, v{base}", f"v_add_u32 v{VW+1}, {d}, v{base}", f"v_xor_b32 v{VW+2}, 32, v{base}", f"v_add_u32 v{VW+3}, {d}, v{VW+2}"]
                    pre += [f"s_mul_i32 s{sOW}, s{sJ}, {cm}", f"s_mul_i32 s{sDT}, s{sW}, {rows//4*P}", f"s_add_u32 s{sOW}, s{sOW}, s{sDT}",
                            f"s_mul_i32 s{sDT}, s{sROT}, {256*P}", f"s_add_u32 s{sOW}, s{sOW}, s{sDT}"] + ([f"s_add_u32 s{sOW}, s{sOW}, {ca}"] if ca else [])
                if ls == ns//2 and OPT.rot1: pre += [f"s_mul_i32 s{sDT}, s{sROT}, {512*P}", f"s_sub_u32 s{sOW}, s{sOW}, s{sDT}"]
            if (kind, st) == ("x", 4) and OPT.rot1: pre += [f"s_lshl_b32 s{sDT}, s{sROT}, 10", f"s_sub_u32 s{sOX}, s{sOX}, s{sDT}"]
            if (kind, st) == ("v2", 0):
                if OPT.slowfix: yield Gate(lambda: self.cp_ok)
                pre += [f"v_mov_b32 v{VX}, v{vDW}"] + [f"v_add_u32 v{VX+n}, s{sH36}, v{VX+n-1}" for n in (1, 2, 3)]
            if (kind, st) == ("v2", 9) and OPT.rot2: pre += [f"s_sub_u32 s{sOW2}, s{sOW2}, s{sWR}"]
            if (kind, st) == ("v2", 16): pre += [f"s_or_b32 s{sOW2}, s{sOW2}, s{sO16}"]
            if (kind, st) == ("v2", 18): pre += [f"s_or_b32 s{sOW2}, s{sOW2}, s{sO18}"]
            for t in pre: s(t); yield "c"
            yield Gate(lambda: len(self.free) > 0)
            slot = self.free.pop(0)
            self.slot_of[(kind, st)] = slot
            self.log.append(f"{kind}{st}:{self.slotno:.0f}")
            def m0(off, extra=None):
                s(f"s_add_u32 m0, s{sMW}, {slot*SLOT+off}")
                if extra: s(extra)
            if kind in ("x", "v2"):
                so, sr_, step = (sOX, SX, 128) if kind == "x" else (sOW2, SC, f"s{sC2}")
                m0(0)
                for n in range(4):
                    last = s(f"buffer_load_dwordx4 v{VX+n}, {srd(sr_)}, s{so} offen offset:{n*1024}{' sc1' if kind == 'v2' else ''} lds"); yield "d"
                s(f"s_add_u32 s{so}, s{so}, {step}"); yield "c"
            elif pk == "q":
                m0(0)
                for n in range(4):
                    last = s(f"buffer_load_dwordx4 v{VW+n}, {srd(SQ)}, s{sOW} offen offset:{n*1024} lds"); yield "d"
                s(f"s_add_u32 s{sOW}, s{sOW}, {rows*P}"); yield "c"
            else:
                sa, sb = (SQ, SQ) if pk == "kv" else (SG, SU)
                for n in range(4):
                    if n % 2 == 0: m0(n*1024); yield "m"
                    last = s(f"buffer_load_dwordx4 v{VW+n}, {srd(sa if n < 2 else sb)}, s{sOW} offen offset:{(n&1)*1024} lds")
                    if pk == "half": last.lines = 16
                    yield "d"
                s(f"s_add_u32 s{sOW}, s{sOW}, {rows*P}"); yield "c"
            self.last_of[(kind, st)] = last

    def dma_step(self, force_item=None, max_d=None):
        u0 = self.s.units
        while self.dma is not None:
            if force_item is not None:
                if force_item in self.last_of: break
            elif max_d is not None and max_d <= 0: break
            if self.dma_gate is not None:
                if not self.dma_gate.fn():
                    assert force_item is None, f"DMA blocked while forcing {force_item} at {self.slotno}"
                    break
                self.dma_gate = None
            try: r = next(self.dma)
            except StopIteration: self.dma = None; break
            if isinstance(r, Gate): self.dma_gate = r; continue
            if r == "d" and max_d is not None: max_d -= 1
        return self.s.units - u0

    def run_tasks(self, budget):
        s = self.s
        while budget > 0:
            progressed = False
            for t in list(self.tasks):
                if t["gate"] is not None:
                    if not t["gate"].fn(): continue
                    t["gate"] = None
                c0 = s.units; n0 = s.count
                try: r = next(t["gen"])
                except StopIteration:
                    self.tasks.remove(t); progressed = True
                    self.log.append(f"{t['gen'].__name__}@{self.slotno:.0f}"); break
                progressed = True
                if isinstance(r, Gate): t["gate"] = r
                if s.count > n0 and s.hist[-1].kind == "mfma": self.slotno += 1; return budget, True
                budget -= s.units - c0
                break
            if not progressed: break
        return budget, False
    def add_task(self, gen): self.tasks.append({"gen": gen, "gate": None})
    def after_slots(self, n):
        t = self.slotno + n
        return Gate(lambda: self.slotno >= t)
    def after_bar(self):
        t = self.nbar + 1
        return Gate(lambda: self.nbar >= t)
    def slack(self):
        k, st = self.cur_item
        if k == "v2": return 999
        if k == "touch": return OPT.lead
        if k == "gran": return OPT.prep_at - self.mainslot
        return 16*(st-1) + 8 - self.mainslot
    def ta_update(self):
        s = self.s
        for ins in s.vmlog[self.ta_seen:]:
            lines = 8
            if "x2" in ins.mn: lines = 5 if "load" in ins.mn else 1
            lines = getattr(ins, "lines", lines)
            self.ta = max(self.ta, self.slotno + min(0, OPT.ta_init + self.slotno)) + lines*OPT.ta_line
            ins.land = self.ta + OPT.lat
        self.ta_seen = len(s.vmlog)
    def fill(self, p, u0):
        s = self.s
        while True:
            bud = OPT.budget[p] + (OPT.boost if self.boost else 0)
            b = bud - (s.units - u0) - self.debt
            self.ta_update()
            free = self.ta - self.slotno <= OPT.ta_ahead and not self.hold_dma
            sl = self.slack(); did = False
            first = OPT.dma_first[p + (10 if self.typ == "Q" else 0)] or not self.boost
            if b > 0 and ((free and (sl <= OPT.lead or first)) or sl <= OPT.crit): b -= self.dma_step(max_d=1); did = True
            b, mf = self.run_tasks(b)
            self.ta_update()
            if not mf and not did and b >= 2 and self.ta - self.slotno <= OPT.ta_ahead and not self.hold_dma: b -= self.dma_step(max_d=1)
            self.debt = max(0, -b) if not mf else 0
            if not mf: break
            u0 = s.units

    def corr(self, p, swap=False, gap=0):
        s = self.s
        _, _, acc, csi, _ = PASSES[self.typ][p]
        for u in range(len(acc)):
            for t in range(2):
                if gap: yield self.after_slots(gap)
                ac = v(acc[u][t], 16); A_, B_ = v(CS+4*csi[u], 4), v(MF+4*t, 4)
                if swap: A_, B_ = B_, A_
                s(f"{MF32} {ac}, {A_}, {B_}, {ac}"); yield
        self.corr_done = p; self.corr_slot.setdefault(p, self.slotno)
    def prep_task(self):
        s = self.s; typ = self.typ
        yield Gate(lambda: self.gran_issued and self.mainslot >= OPT.prep_at)
        s.wait(vm=self.ld_gran); yield
        pairs = [(ST+1, f"s{sTAG}"), (ST+3, f"s{sTAG}")]
        for u in range(5): pairs += [(CS+4*u+1, f"s{sTAG}"), (CS+4*u+3, f"v{vE3}")]
        yield from self.check(pairs, self.gran_loads, typ + "g", vLT)
        s(f"s_mov_b32 s{sT2}, 0x01000100"); yield
        for t in range(2):
            g = ST+2*t
            for x in (f"v_and_b32 v{vD+t}, 0xffff0000, v{g}", f"v_xor_b32 v{g}, 0x8000, v{g}", f"v_rcp_f32 v{vC+t}, v{vD+t}",
                      f"v_perm_b32 v{MF+4*t}, v{g}, v{g}, s{sT2}", f"v_mov_b32 v{MF+4*t+1}, 0", f"v_mov_b32 v{MF+4*t+2}, v{MF+4*t}", f"v_mov_b32 v{MF+4*t+3}, 0",
                      f"v_mul_f32 v{vC+t}, {hex(LOG2E)}, v{vC+t}"): s(x); yield
        self.prep_done = True
        yield from self.corr(0, swap=(typ == "H"))

    def glu_ep(self, R, t, soff, imm):
        s = self.s; G, U = R, R+8
        for i in range(8): s(f"v_mul_f32 v{G+i}, v{vC+t}, v{G+i}"); yield
        for i in range(8): s(f"v_exp_f32 v{G+i}, -v{G+i}"); yield
        for i in range(8): s(f"v_fma_f32 v{G+i}, v{G+i}, v{vD+t}, v{vD+t}"); yield
        for i in range(8): s(f"v_rcp_f32 v{G+i}, v{G+i}"); yield
        for i in range(8): s(f"v_mul_f32 v{U+i}, v{U+i}, v{G+i}"); yield
        for i in range(4): s(f"v_cvt_pk_bf16_f32 v{G+i}, v{U+2*i}, v{U+2*i+1}"); yield
        self.last_store = s(f"buffer_store_dwordx4 {v(G,4)}, v{vL16}, {srd(SH)}, s{soff} offen offset:{imm} sc1"); yield
    def glu_pass(self, p, so):
        s = self.s
        pk, _, acc, _, (cm, ca) = PASSES[self.typ][p]
        if pk == "half": L = [f"s_lshl_b32 s{so}, s{sJ}, 1", f"s_add_u32 s{so}, s{so}, s{sCH}", f"s_add_u32 s{so}, s{so}, 96"]
        else: L = [f"s_mul_i32 s{so}, s{sJ}, 6", f"s_add_u32 s{so}, s{so}, s{sCH}", f"s_lshl_b32 s{so}, s{so}, 1"] + ([f"s_add_u32 s{so}, s{so}, {ca//32}"] if ca else [])
        for x in L + [f"s_lshl_b32 s{so}, s{so}, 11", f"s_add_u32 s{so}, s{so}, s{sOH}"]: s(x); yield
        for u in range(len(acc)):
            for t in range(2): yield from self.glu_ep(acc[u][t], t, so, u*2048+t*1024)
            self.ep_units[p] = u+1
    def flag(self, off, base, delay):
        s = self.s; st = self.last_store
        yield self.after_slots(delay)
        s(f"v_mov_b32 v{ST}, s{sTAG}"); yield
        s(f"v_mov_b32 v{ST+1}, s{sEP}"); yield
        if base: s(f"s_add_u32 s{sT3}, s{off}, {base}")
        s.wait(vm=st)
        s("s_mov_b64 exec, 1")
        s(f"buffer_store_dwordx2 {v(ST,2)}, off, {srd(SS)}, s{sT3 if base else off} sc1")
        s("s_mov_b64 exec, -1"); yield
    def phi(self, R, n, creg, tmp):
        s = self.s
        eps = hex(f2u(1e-6*1.4426950408889634))
        for b in range(0, n, 4):
            for i in range(4): s(f"v_mul_f32 v{R+b+i}, v{creg(b+i)}, v{R+b+i}"); yield
            for i in range(4): s(f"v_exp_f32 v{tmp+i}, v{R+b+i} clamp"); yield
            for i in range(4): s(f"v_max_f32 v{R+b+i}, {eps}, v{R+b+i}"); yield
            for i in range(4): s(f"v_fmac_f32 v{tmp+i}, s{sLN2}, v{R+b+i}"); yield
            for i in range(2): s(f"v_cvt_pk_bf16_f32 v{R+b//2+i}, v{tmp+2*i}, v{tmp+2*i+1}"); yield

    def kv_task(self):
        s = self.s; T = TMP
        yield Gate(lambda: self.prep_done)
        ad, ad2 = vG0, vG1
        for x in (f"s_add_u32 s{sT1}, s{sMW}, {XTRA}", f"v_and_b32 v{ad}, 31, v{vL}", f"v_lshl_add_u32 v{ad}, v{ad}, 2, s{sT1}",
                  f"v_lshrrev_b32 v{ad2}, 5, v{vL}", f"v_lshl_add_u32 v{ad2}, v{ad2}, 4, s{sT1}"): s(x); yield
        s(f"ds_write_b32 v{ad}, v{vC}"); yield
        s(f"ds_write_b32 v{ad}, v{vC+1} offset:128"); yield
        for t in range(2):
            for i in range(4): rd = s(f"ds_read_b128 {v(T+16*t+4*i,4)}, v{ad2} offset:{128*t+32*i}"); yield
        for x in (f"v_add_u32 v{ad}, s{sT1}, v{vL16}", f"v_xor_b32 v{ad2}, 0x2000, v{ad}"): s(x); yield
        yield Gate(lambda: self.mainslot >= 130 and self.slotno >= self.corr_slot.get(0, 1e9) + 2)
        self.boost = True
        s.wait(lg=rd); yield
        tmp = CS
        for t in range(2):
            yield from self.phi(ACCA+16*t, 16, lambda i: T+16*t+i, tmp)
            Vr = ACCA+32+16*t
            for i in range(16): s(f"v_mul_f32 v{Vr+i}, v{T+16*t+i}, v{Vr+i}"); yield
            for i in range(8): s(f"v_cvt_pk_bf16_f32 v{Vr+i}, v{Vr+2*i}, v{Vr+2*i+1}"); yield
        D1, D2 = T, T+16
        first = True
        for t in range(2):
            for kk in range(2):
                pk = v(ACCA+16*t+4*kk, 4); vv = v(ACCA+32+16*t+4*kk, 4)
                s(f"{MF32} {v(D1,16)}, {pk}, {vv}, {'0' if first else v(D1,16)}"); yield
                s(f"{MF32} {v(D2,16)}, {pk}, {v(KF,4)}, {'0' if first else v(D2,16)}"); yield
                first = False
        self.ep_units[0] = 2
        yield self.after_slots(2)
        mk = f"s[{sMK}:{sMK+1}]"
        for i in range(8): s(f"v_cndmask_b32 v{D1+i}, v{D1+i}, v{D2+i}, {mk}"); yield
        for i in range(8, 16): s(f"v_cndmask_b32 v{D1+i}, v{D2+i}, v{D1+i}, {mk}"); yield
        for i in range(4): w = s(f"ds_write_b128 v{ad}, {v(D1+4*i,4)} offset:{1024*i}"); yield
        yield self.after_slots(2)
        s.wait(lg=w)
        s("s_barrier"); yield
        for i in range(4): rd = s(f"ds_read_b128 {v(D2+4*i,4)}, v{ad2} offset:{1024*i}"); yield
        yield self.after_slots(3)
        s.wait(lg=rd); yield
        for i in range(16): s(f"v_add_f32 v{D1+i}, v{D1+i}, v{D2+i}"); yield
        for i in range(8): s(f"v_cvt_pk_bf16_f32 v{D2+i}, v{D1+2*i}, v{D1+2*i+1}"); yield
        for x in self.kvaddr(ad, ad2, True): s(x); yield
        s(f"s_cmp_eq_u32 s{sTG}, 0\ns_cselect_b64 vcc, 0, -1")
        for i in range(4): s(f"v_cndmask_b32 v{D2+i}, v{D2+i}, v{D2+4+i}, vcc")
        yield
        self.last_store = s(f"buffer_store_dwordx4 {v(D2,4)}, v{ad}, {srd(SS)}, s{sKV} offen sc1"); self.last_store.lines = 5; yield
        self.boost = False
        yield from self.flag(sKF, 0, OPT.flag_delay)

    def kvaddr(self, ad, t, store):
        o = [f"v_and_b32 v{ad}, 15, v{vL}", f"v_lshrrev_b32 v{t}, 5, v{vL}", f"v_lshl_add_u32 v{ad}, v{t}, 4, v{ad}", f"v_lshlrev_b32 v{ad}, 4, v{ad}", f"v_lshlrev_b32 v{t}, 4, v{t}", f"v_add_u32 v{t}, 512, v{t}"]
        if store: o += [f"v_and_b32 v{vBT}, 15, v{vL}", f"v_lshl_add_u32 v{t}, v{vBT}, 26, v{t}"]
        o += [f"v_bfe_u32 v{vBT}, v{vL}, 4, 1", f"v_cmp_eq_u32 vcc, s{sTG}, v{vBT}\nv_cndmask_b32 v{ad}, v{t}, v{ad}, vcc"]
        return o
    def kvreg(self, r): return (TMP+4*r) if r < 8 else (ACCA+32+4*(r-8))
    def q_phi(self):
        yield self.after_slots(3)
        for t in range(2): yield from self.phi(ACCB+16*t, 16, lambda i, t=t: vC+t, CS+16)
        self.phi_done = True
    def q_task(self):
        s = self.s
        ad, ad2 = vG0, vG1
        SUM, KA = CS, MF
        for x in (f"v_and_b32 v{ad}, 15, v{vL}", f"v_lshlrev_b32 v{ad}, 3, v{ad}"): s(x); yield
        yield Gate(lambda: self.slotno >= OPT.kv_poll_at)
        txt = f"buffer_load_dwordx2 {v(ST+2,2)}, v{ad}, {srd(SS)}, s{sKF} offen sc1"
        ld = s(txt); yield
        yield self.after_slots(OPT.kv_poll_wait)
        yield Gate(lambda: self.ep_units[0] == 2 and self.corr_done == 2)
        s.wait(vm=ld); yield
        yield from self.check([(ST+2, f"s{sTAG}"), (ST+3, f"s{sEP}")], [txt], "kvf")
        for x in self.kvaddr(ad, ad2, False): s(x); yield
        kl = []; self.hold_dma = True
        for r in range(16):
            yield Gate(lambda: self.ta - self.slotno <= OPT.ta_ahead + OPT.kv_ahead)
            if r and r % 4 == 0: s(f"s_add_u32 s{sKV}, s{sKV}, {4*KVS}")
            kl.append(s(f"buffer_load_dwordx4 {v(self.kvreg(r),4)}, v{ad}, {srd(SS)}, s{sKV} offen offset:{(r%4)*KVS} sc1")); kl[-1].lines = 5; yield
        self.hold_dma = False
        for x in (f"s_add_u32 s{sE1}, s{sMW}, {XTRA}", f"v_add_u32 v{ad}, s{sE1}, v{vL16}", f"s_lshl_b32 s{sE1}, s{sCH}, 12", f"s_add_u32 s{sE1}, s{sE1}, {XTRA}", f"v_add_u32 v{ad2}, s{sE1}, v{vL16}",
                  f"s_lshl_b32 s{sE1}, s{sJ}, 1", f"s_add_u32 s{sE1}, s{sE1}, s{sCH}", f"s_lshl_b32 s{sE1}, s{sE1}, 12", f"s_add_u32 s{sE1}, s{sE1}, {112*2048}", f"s_add_u32 s{sE1}, s{sE1}, s{sOH}",
                  f"v_mov_b32 v{ST+2}, s{sEP}"): s(x); yield
        for r in range(16):
            if r % 4 == 0:
                yield Gate(lambda: getattr(kl[r+3], "land", 1e9) <= self.slotno)
                s.wait(vm=kl[r+3])
            s(f"{MF32} {v(SUM,16)}, {v(KF,4)}, {v(self.kvreg(r),4)}, {'0' if r == 0 else v(SUM,16)}"); yield
        yield self.after_slots(2)
        for i in range(4): s(f"v_cvt_pk_bf16_f32 v{SUM+i}, v{SUM+2*i}, v{SUM+2*i+1}"); yield
        w = s(f"ds_write_b128 v{ad}, {v(SUM,4)}"); yield
        yield self.after_slots(2)
        s.wait(lg=w)
        s("s_barrier"); yield
        s(f"ds_read_b128 {v(KA,4)}, v{ad2}"); yield
        rd = s(f"ds_read_b128 {v(KA+4,4)}, v{ad2} offset:8192"); yield
        s("s_mov_b64 exec, 1")
        i_ = s(f"buffer_store_dword v{ST+2}, off, {srd(SS)}, s{sEO} sc1"); i_.lines = 0
        s("s_mov_b64 exec, -1"); yield
        yield self.after_slots(2)
        yield Gate(lambda: self.phi_done)
        s.wait(lg=rd)
        Ds = [TMP, TMP+16, ACCA+32, ACCA+48]
        for t in range(2):
            for hd in range(2):
                s(f"{MF32} {v(Ds[2*t+hd],16)}, {v(KA+4*hd,4)}, {v(ACCB+16*t+4*hd,4)}, 0"); yield
        for t in range(2):
            for hd in range(2):
                D = Ds[2*t+hd]; num, den = (D, D+8) if hd == 0 else (D+8, D)
                s(f"v_add_f32 v{den}, {hex(f2u(1e-6))}, v{den}"); yield
                s(f"v_rcp_f32 v{den}, v{den}"); yield
                s(f"v_mul_f32 v{num}, s{sLN2}, v{num}"); yield
                s(f"v_mul_f32 v{den+1}, s{sLN2}, v{den}"); yield
                s(f"v_mul_f32 v{num}, v{den}, v{num}"); yield
                for i in range(1, 8): s(f"v_mul_f32 v{num+i}, v{den+1}, v{num+i}"); yield
                for i in range(4): s(f"v_cvt_pk_bf16_f32 v{den+4+i}, v{num+2*i}, v{num+2*i+1}"); yield
                self.last_store = s(f"buffer_store_dwordx4 {v(den+4,4)}, v{vL16}, {srd(SH)}, s{sE1} offen offset:{hd*2048+t*1024} sc1"); yield
        self.q_done = True
        yield from self.flag(sOF, FLAGA, OPT.flag_delay)
        self.flagA_done = True

    def reads_for(self, G):
        st, q = G//4, G % 4
        p, ls = self.pass_of(st); pk = PASSES[self.typ][p][0]
        b = WB + 8*(G % 3)
        if pk in ("kv", "glu"):
            w0 = [f"ds_read_b64_tr_b16 {v(b,2)}, v{WA} offset:{q*4096}", f"ds_read_b64_tr_b16 {v(b+2,2)}, v{WA} offset:{q*4096+512}"]
            w1 = [f"ds_read_b64_tr_b16 {v(b+4,2)}, v{WA+1} offset:{q*4096}", f"ds_read_b64_tr_b16 {v(b+6,2)}, v{WA+1} offset:{q*4096+512}"]
            if st < 8: return [f"ds_read_b128 {a((2*G)*4,4)}, v{XA+q}"] + w0 + [f"ds_read_b128 {a((2*G+1)*4,4)}, v{XA+q} offset:4096"] + w1
            return w0 + w1
        d, e = (1024, 256) if pk == "half" else (2048, 512)
        o = []
        for sb in range(2):
            o += [f"ds_read_b64_tr_b16 {v(b+4*sb,2)}, v{WA} offset:{q*4096+sb*d}", f"ds_read_b64_tr_b16 {v(b+4*sb+2,2)}, v{WA} offset:{q*4096+sb*d+e}"]
        return o
    def mfmas_for(self, G):
        st, q = G//4, G % 4
        p, ls = self.pass_of(st); pk, _, acc, _, _ = PASSES[self.typ][p]
        b = WB + 8*(G % 3); o = []
        for h in range(2):
            u, ks = (h, 4*ls+q) if len(acc) == 2 else (0, 2*(4*ls+q)+h)
            for t in range(2):
                ac = v(acc[u][t], 16); W_, X_ = v(b+4*h, 4), a((2*ks+t)*4, 4)
                if pk == "kv": W_, X_ = X_, W_
                o.append(f"{MF32} {ac}, {W_}, {X_}, {'0' if ks == 0 else ac}")
        return o
    def barrier(self, n):
        s = self.s
        its = self.items_of(n)
        for it in its: self.dma_step(force_item=it)
        vm = max((self.last_of[it] for it in its), key=lambda i: i.vmseq) if its else None
        lg = self.pend_w; self.pend_w = None
        if vm is not None or lg is not None: s.wait(vm=vm, lg=lg)
        s("s_barrier"); self.nbar += 1
        for it in self.items_of(n-2): self.free.append(self.slot_of[it])
    def addr_update(self, txt, Gr):
        s = self.s
        st, q = Gr//4, Gr % 4
        n = st + 1
        if n >= 20: return
        its = self.items_of(n)
        def need(it):
            if it not in self.slot_of: self.dma_step(force_item=it)
            return self.slot_of[it]
        if "b128" in txt and "offset:4096" in txt and n < 8:
            d = ((need(its[0]) - self.slot_of[("x", st)])*SLOT) & 0xffffffff
            if d: s(f"v_add_u32 v{XA+q}, {hex(d)}, v{XA+q}")
        if q == 3 and "tr" in txt:
            rl = self.reads_for(Gr)
            p, ls = self.pass_of(n); pk = PASSES[self.typ][p][0]
            base = need(its[-1])*SLOT
            if ls == 0:
                if txt == rl[-1]:
                    s(f"v_add_u32 v{WA}, {hex(base)}, v{vRG if pk == 'glu' else vRS}")
                    if pk == "glu": s(f"v_xor_b32 v{WA+1}, 32, v{WA}")
            else:
                d = (base - self.slot_of[("w", st)]*SLOT) & 0xffffffff
                for r in range(2):
                    uses = [x for x in rl if f", v{WA+r} " in x]
                    if uses and uses[-1] == txt and d: s(f"v_add_u32 v{WA+r}, {hex(d)}, v{WA+r}")

    def phase1(self, typ):
        s = self.s
        self.typ = typ; self.ntr = 0
        self.tasks = []; self.free = list(range(2, NSLOT)); self.slot_of = {("x", 0): 0, ("w", 0): 1}; self.last_of = {("x", 0): self.x0last, ("w", 0): self.w0last}
        self.dma = self.dma_task(); self.dma_gate = None
        self.slotno = 0; self.mainslot = 0; self.nbar = 0; self.pend_w = None; self.debt = 0; self.boost = False; self.cur_item = ("x", 1)
        self.cs_consumed = self.gran_issued = self.prep_done = self.phi_done = self.q_done = self.cp_ok = self.hold_dma = False
        self.flagA_done = (typ == "H"); self.corr_done = -1; self.corr_slot = {}; self.ep_units = {0: 0, 1: 0, 2: 0}
        self.type_setup(typ)
        self.dma_step(force_item=("x", 1))
        self.stats_compute()
        self.dma_step(force_item=("w", 1))
        self.barrier(0)
        self.stamp(3); self.tr()
        rdl = {}
        for G in (0, 1):
            for x in self.reads_for(G): rdl[G] = s(x); self.addr_update(x, G)
        for it in [("x", 2), ("w", 2)][:OPT.pre_items]: self.dma_step(force_item=it)
        def cps():
            yield self.after_slots(OPT.cs_delay)
            self.cp_store(); yield
        self.ta_seen = len(s.vmlog); self.ta = OPT.ta_init
        self.add_task(cps())
        self.add_task(self.colsum_task())
        self.add_task(self.prep_task())
        if OPT.slowfix: self.add_task(self.cp_poll())
        if typ == "H": self.add_task(self.kv_task())
        G2 = 4*(8 + PASSES[typ][1][1])
        for G in range(80):
            p = 0 if G < 32 else (1 if G < G2 else 2)
            if G in (32, G2): self.log.append(f"|G{G}@{self.slotno}|")
            if G == 32:
                self.stamp(4)
                def c1():
                    yield Gate(lambda: self.corr_done == 0)
                    yield from self.corr(1, gap=3)
                if typ == "Q":
                    def epA():
                        yield Gate(lambda: self.slotno >= self.corr_slot.get(0, 1e9) + 2 and self.mainslot >= 130)
                        yield from self.glu_pass(0, sT1)
                    self.add_task(c1()); self.add_task(epA())
                else: self.add_task(c1())
            if G == G2:
                self.stamp(5)
                assert self.ep_units[0] >= 1 and self.corr_done == 1, "second pass tasks late"
                self.tasks.insert(0, {"gen": self.corr(2, gap=3), "gate": None})
                if typ == "Q":
                    self.add_task(self.q_task()); self.add_task(self.q_phi())
                else:
                    def epB():
                        yield self.after_slots(3)
                        yield from self.glu_pass(1, sT1)
                    self.add_task(epB())
            s.wait(lg=rdl[G])
            nxt = self.reads_for(G+2) if G+2 < 80 else []
            for i, m in enumerate(self.mfmas_for(G)):
                s(m); self.slotno += 1; self.mainslot += 1
                u0 = s.units - (OPT.c_s if i == 3 else 0)
                if i == 0: self.tr()
                if G % 4 == 2 and i == 0: self.barrier(G//4+1)
                if G == 79 and i == 0: self.barrier(21)
                lo, hi = (i*len(nxt)+3)//4, ((i+1)*len(nxt)+3)//4
                for x in nxt[lo:hi]: rdl[G+2] = s(x); self.addr_update(x, G+2)
                self.fill(p, u0)
        self.stamp(6); self.tr()
        self.log.append(f"|end@{self.slotno}|")

    def move_task(self):
        s = self.s
        for x in (f"v_mov_b32 v{WA}, v{vR2}", f"v_xor_b32 v{WA+1}, 64, v{vR2}"): s(x); yield
        base = 0; prev = None
        for c in range(19):
            yield Gate(lambda: ("v2", c) in self.last_of and getattr(self.last_of[("v2", c)], "land", 1e9) <= self.slotno)
            if c >= 16: yield Gate(lambda: self.q_done or self.typ == "H")
            slot = self.slot_of[("v2", c)]
            d = (slot*SLOT - base) & 0xffffffff; base = slot*SLOT
            if d:
                for r in range(2): s(f"v_add_u32 v{WA+r}, {hex(d)}, v{WA+r}"); yield
            s.wait(vm=self.last_of[("v2", c)]); yield
            for sb in range(2):
                n = 2*c+sb
                for c2 in range(2):
                    for hf in range(2):
                        dst = a(8*n+4*c2+2*hf, 2) if n < 32 else v(W2B+8*(n-32)+4*c2+2*hf, 2)
                        rd = s(f"ds_read_b64_tr_b16 {dst}, v{WA+c2} offset:{sb*2048+hf*1024}"); yield
            if prev is not None:
                s.wait(lg=prev[1]); self.free.append(prev[0]); yield
            prev = (slot, rd)
    def tail_ep(self):
        yield from self.glu_pass(2, sPP)
        yield Gate(lambda: self.ep_units[1 if self.typ == "H" else 0] == 2)
        self.tail_done = True
        yield from self.flag(sOF, FLAGB, OPT.tail_flag_delay)
        self.flagB_done = True
    def poll_task(self):
        s = self.s
        yield Gate(lambda: self.tail_done and ("v2", OPT.poll_chunk) in self.last_of)
        for x in (f"s_cmp_eq_u32 s{sW}, 0", f"s_cselect_b32 s{sT2}, 15, 31", f"v_and_b32 v{vQ0}, s{sT2}, v{vL}", f"v_lshlrev_b32 v{vQ0}, 3, v{vQ0}"): s(x)
        yield Gate(lambda: self.flagB_done and self.flagA_done)
        txt = f"buffer_load_dwordx2 {v(MF,2)}, v{vQ0}, {srd(SS)}, s{sFA} offen sc1"
        pl = s(txt); yield
        yield Gate(lambda: self.dma is None and getattr(pl, "land", 1e9) <= self.slotno)
        self.stamp(7); self.tr()
        s.wait(vm=pl)
        for _ in self.check([(MF, f"s{sTAG}"), (MF+1, f"s{sEP}")], [txt], "pa" + self.typ): pass
        self.stamp(8); self.tr()
        self.nvm_h0 = s.nvm
        for n in range(NB-1):
            for _ in self.hissue(n): yield
    def tail(self):
        s = self.s
        self.tail_done = self.flagB_done = False; self.loads = {}
        te = {"gen": self.tail_ep(), "gate": None}
        pri = self.tasks + [te] if self.typ == "H" else [te]
        mid = self.tasks if self.typ == "Q" else []
        low = [{"gen": self.move_task(), "gate": None}, {"gen": self.poll_task(), "gate": None}]
        t0 = self.slotno; u0 = s.units; self.extra = 0.0
        def now(): return t0 + (s.units - u0)/8.0 + self.extra
        def sync(): self.slotno = now(); self.ta_update()
        def step(tl, n):
            self.tasks = list(tl); c0 = s.count
            while s.count - c0 < n and self.tasks:
                c1 = s.count
                self.run_tasks(0.1)
                if s.count > c1 and s.hist[-1].kind == "mfma": self.extra += 0.85
                sync()
                if s.count == c1 and all(t["gate"] is not None and not t["gate"].fn() for t in self.tasks): break
            return self.tasks
        idle = 0; ta_save = OPT.ta_line; OPT.ta_line = OPT.tail_ta
        while pri or mid or low or self.dma is not None:
            c0 = s.count
            sync()
            if self.ta - self.slotno <= OPT.tail_ahead and not self.hold_dma: self.dma_step(max_d=1); sync()
            low = step(low, OPT.tail_low)
            mid = step(mid, OPT.tail_mid if pri else 6)
            pri = step(pri, OPT.tail_pri)
            if s.count == c0:
                self.extra += 0.5; idle += 1
                assert idle < 2000, "tail deadlock"
        OPT.ta_line = ta_save
        self.log.append(f"|tailend@{now():.0f} idle {idle/2}|")
        assert s.nvm - self.nvm_h0 == 2*(NB-1)
        s.wait(lg=0)

    def hissue(self, n):
        s = self.s
        if n >= 38: return
        so, imm = sHA, (n % 2)*2048
        if n == 18 and OPT.rot2: s(f"s_sub_u32 s{so}, s{so}, s{sHR}")
        if n == 32: s(f"s_or_b32 s{so}, s{so}, s{sO16}")
        if n == 36: s(f"s_or_b32 s{so}, s{so}, s{sO18}")
        s(f"buffer_load_dwordx4 {v(hb(n),4)}, v{vL16}, {srd(SH)}, s{so} offen offset:{imm} sc1"); yield
        self.loads[n] = s(f"buffer_load_dwordx4 {v(hb(n)+4,4)}, v{vL16}, {srd(SH)}, s{so} offen offset:{imm+1024} sc1")
        if n % 2 == 1: s(f"s_add_u32 s{so}, s{so}, 4096")
        yield
    def phase2(self):
        s = self.s
        ACC = ACCA; loads = self.loads; XR = TMP; T = vBT; RW, RR = VX, XA
        setup = [f"v_lshrrev_b32 v{T}, 3, v{vL}", f"v_and_b32 v{vSV}, 7, v{vL}", f"v_lshlrev_b32 v{vSV}, 4, v{vSV}", f"v_lshl_add_u32 v{vSV}, v{T}, 10, v{vSV}",
                 f"s_lshl_b32 s{sT1}, s{sTB}, 2", f"s_add_u32 s{sT1}, s{sT1}, s{sW}", f"s_lshl_b32 s{sT1}, s{sT1}, 14", f"s_lshl_b32 s{sT2}, s{sCT}, 7", f"s_add_u32 s{sT1}, s{sT1}, s{sT2}", f"s_add_u32 s{sT2}, s{sT1}, 8192",
                 f"buffer_load_dwordx4 {v(XR,4)}, v{vSV}, {srd(SX)}, s{sT1} offen", f"buffer_load_dwordx4 {v(XR+4,4)}, v{vSV}, {srd(SX)}, s{sT2} offen",
                 f"v_and_b32 v{RW}, 15, v{vL}", f"v_lshlrev_b32 v{RW}, 8, v{RW}", f"v_bfe_u32 v{T}, v{vL}, 4, 1", f"v_lshl_add_u32 v{RW}, v{T}, 14, v{RW}",
                 f"v_lshrrev_b32 v{T}, 5, v{vL}", f"v_xor_b32 v{T}, v{T}, v{vL}", f"v_and_b32 v{T}, 7, v{T}", f"v_lshl_add_u32 v{RW}, v{T}, 4, v{RW}", f"v_add_u32 v{RW}, s{sMW}, v{RW}"]
        setup += [f"v_xor_b32 v{RW+i}, {32*i}, v{RW}" for i in (1, 2, 3)]
        setup += [f"v_lshrrev_b32 v{T}, 3, v{vL}", f"v_lshlrev_b32 v{RR}, 8, v{T}", f"v_and_b32 v{RR+1}, 7, v{vL}", f"v_lshlrev_b32 v{RR+1}, 1, v{RR+1}", f"v_xor_b32 v{T}, v{T}, v{RR+1}",
                  f"v_lshl_add_u32 v{RR}, v{T}, 4, v{RR}", f"s_lshl_b32 s{sT3}, s{sW}, 14", f"v_add_u32 v{RR}, s{sT3}, v{RR}", f"v_xor_b32 v{RR+1}, 16, v{RR}",
                  f"s_mov_b32 s{sT3}, {hex(LOG2E | 0x80000000)}"]
        for n in range(38):
            if n == 32: s(f"s_cmp_eq_u32 s{sW}, 0\ns_cbranch_scc1 L_red")
            s.wait(vm=loads[n])
            ig = self.hissue(n+NB-1)
            for c2 in range(2):
                for t in range(2):
                    ac = v(ACC+32*c2+16*t, 16)
                    W_ = a(8*n+4*c2, 4) if n < 32 else v(W2B+8*(n-32)+4*c2, 4)
                    s(f"{MF32} {ac}, {W_}, {v(hb(n)+4*t,4)}, {'0' if n == 0 else ac}")
                    if c2 == 0: next(ig, None)
                    elif n >= 1:
                        for _ in range(3):
                            if setup: s(setup.pop(0))
                    if c2 == 1 and t == 1 and n % 2 == 1: self.tr()
        s.label("L_red")
        self.stamp(9)
        for c2 in range(2):
            for t in range(2):
                for i in range(4):
                    w = s(f"ds_write_b128 v{RW+i}, {v(ACC+32*c2+16*t+4*i,4)} offset:{t*32768+c2*128}")
        s.wait(lg=w)
        s("s_barrier")
        P = HB; rds = {}
        for n in range(2):
            for wp in (1, 2, 3, 0):
                for h in range(2): rds[(n, wp)] = s(f"ds_read_b128 {v(P+32*n+8*wp+4*h,4)}, v{RR+h} offset:{wp*4096+n*2048}")
        s("s_waitcnt vmcnt(0)")
        for n in range(2):
            B = P+32*n
            s.wait(lg=rds[(n, 3)])
            for i in range(0, 8, 2): s(f"v_pk_add_f32 {v(B+8+i,2)}, {v(B+8+i,2)}, {v(B+16+i,2)}")
            for i in range(0, 8, 2): s(f"v_pk_add_f32 {v(B+8+i,2)}, {v(B+8+i,2)}, {v(B+24+i,2)}")
            for i in range(8): s(f"v_mul_f32 v{B+16+i}, s{sT3}, v{B+8+i}")
            for i in range(8): s(f"v_exp_f32 v{B+16+i}, v{B+16+i}")
            s.wait(lg=rds[(n, 0)])
            for i in range(0, 8, 2): s(f"v_pk_mul_f32 {v(B+i,2)}, {v(B+i,2)}, {v(B+8+i,2)}")
            for i in range(8): s(f"v_add_f32 v{B+16+i}, 1.0, v{B+16+i}")
            for i in range(8): s(f"v_rcp_f32 v{B+16+i}, v{B+16+i}")
            for i in range(4):
                s(f"v_lshlrev_b32 v{B+24+2*i}, 16, v{XR+4*n+i}\nv_and_b32 v{B+25+2*i}, 0xffff0000, v{XR+4*n+i}")
            for i in range(0, 8, 2): s(f"v_pk_fma_f32 {v(B+i,2)}, {v(B+i,2)}, {v(B+16+i,2)}, {v(B+24+i,2)}")
            for i in range(4): s(f"v_cvt_pk_bf16_f32 v{B+8+i}, v{B+2*i}, v{B+2*i+1}")
            s(f"buffer_store_dwordx4 {v(B+8,4)}, v{vSV}, {srd(SO)}, s{sT1 if n == 0 else sT2} offen {OPT.out_flag}")
        self.stamp(10); self.tr(); self.tr()
        if OPT.diag == "phase":
            A_, B_ = self.STREG[OPT.diag_n[0]], self.STREG[OPT.diag_n[1]]
            s(f"s_waitcnt lgkmcnt(0)\ns_cmp_lg_u32 s2, {OPT.diag_n[2]}\ns_cbranch_scc1 L_exit\ns_sub_u32 s{sT0}, s{B_}, s{A_}\ns_mul_i32 s{sT0}, s{sT0}, 10\ns_min_u32 s{sT0}, s{sT0}, 20000")
            s.label("L_spin2")
            s(f"s_memrealtime s[86:87]\ns_waitcnt lgkmcnt(0)\ns_sub_u32 s86, s86, s{self.STREG[10]}\ns_cmp_lt_u32 s86, s{sT0}\ns_cbranch_scc1 L_spin2")
        else: self.stamp_flush()
        if OPT.diag == "fixed":
            s.label("L_spin")
            s(f"s_memrealtime s[98:99]\ns_waitcnt lgkmcnt(0)\ns_sub_u32 s98, s98, s100\ns_cmp_lt_u32 s98, {OPT.diag_n}\ns_cbranch_scc1 L_spin")
        s.label("L_exit")
        s("s_endpgm")

def build(over=None):
    for k, val in DEFAULTS.items(): setattr(OPT, k, val)
    for k, val in (over or {}).items():
        assert k in DEFAULTS, k
        setattr(OPT, k, {int(x): y for x, y in val.items()} if isinstance(val, dict) else val)
    g = Gen(); s = g.s
    g.prologue()
    nvm0, hist0 = s.nvm, list(s.hist)
    g.phase1("H"); g.tail()
    cH = s.count; ntrH = g.ntr
    s("s_branch L_p2")
    s.label("L_typeQ")
    s.nvm = nvm0; s.hist = hist0
    g.phase1("Q"); g.tail()
    assert g.ntr == ntrH
    s.label("L_p2")
    g.phase2()
    body = s.text() + "".join(g.tailblocks) + "L_codeend:\n"
    head = f"""; fused LayerNorm + linear attention + GLU block: one launch, 256 co-resident workgroups (generated by my gen/kern2.py)
; @launch grid=(256,1,1) block=(256,1,1) lds={LDS_BYTES}
.amdgcn_target "amdgcn-amd-amdhsa--gfx950"
.text
.globl {NAME}
.p2align 8
.type {NAME},@function
{NAME}:
"""
    foot = f""".section .rodata,"a"
.p2align 6
.amdhsa_kernel {NAME}
  .amdhsa_next_free_vgpr 512
  .amdhsa_next_free_sgpr 102
  .amdhsa_accum_offset 256
  .amdhsa_group_segment_fixed_size 0
  .amdhsa_kernarg_size 80
  .amdhsa_user_sgpr_count 2
  .amdhsa_user_sgpr_kernarg_segment_ptr 1
  .amdhsa_system_sgpr_workgroup_id_x 1
  .amdhsa_float_denorm_mode_32 3
.end_amdhsa_kernel
"""
    print(" ".join(g.log), file=sys.stderr)
    print(f"instrs {s.count} (H path {cH}) nop states {s.nops}", file=sys.stderr)
    return head + body + foot

if __name__ == "__main__":
    open(sys.argv[1], "w").write(build(json.loads(sys.argv[2]) if len(sys.argv) > 2 else {}))
```

```python
import sys, struct, json
from emit import Stream

NAME = "recurrent_scan__linear_attn_block__glu_gated_glu__prompt_kernel"
EPOCH, STATS, FLAGA, FLAGB, KVFLAG = 0, 0x1000, 0x5000, 0x7000, 0x9000
CPFLAG, COLSUM, KV, STAMP, W2C, SMALL = 0xA000, 0x10000, 0x40000, 0xC0000, 0x100000, 0x148000
KVS = 640
H_OFF, TBB = 0x200000, 144*2048
H_BYTES = 32*TBB
OOB = 0x40000000
NSLOT, SLOT, XTRA = 9, 16384, 147456
XS = [0, 16384, 32768]; WS = [49152 + 20480*i for i in range(4)]
LDS_BYTES = 163840
sBT, sROT, sDT, sMK, sTP = 0, 1, 3, 10, 20
sCPX, sCPO, sC2, sWR, sHR, sO16, sO18, sH36, sW0X = 4, 6, 7, 8, 9, 12, 13, 14, 16
sM1 = 15
SX, SQ, SG, SU, SF, SO, SS, SH, SC = 24, 28, 32, 36, 40, 44, 48, 52, 56
sW, sTG, sCH, sRB, sJ, sTAG, sEP, sTB, sCT = 60, 61, 62, 63, 64, 65, 66, 67, 68
sOX, sO1, sMW, sO3, sOH, sOF, sT0, sT1, sT2, sT3 = 69, 70, 71, 72, 73, 74, 75, 76, 77, 78
sCS, sO2 = 79, 83
sPO, sPP, sPS = 84, 85, 86
sOW2, sHA, sHB, sFA, sKV, sKF, sEO, sCNT, sE1, sE2, sR4 = 87, 88, 89, 90, 91, 92, 93, 94, 95, 96, 97
sO4 = sEO; sMH = sE1; sCL = sCNT
sST = 98
def srd(n): return f"s[{n}:{n+3}]"
vBT, vL, vL16, vDT = 0, 1, 2, 3
VX, vDW, W2A, vCK, XA, WA, WV = 4, 8, 9, 11, 12, 16, 20
CS, ST, MF, vC, vD, KF, TMP = 24, 44, 48, 56, 58, 60, 64
vSV, vG0, vQ0, vCV, vLT = TMP+11, TMP+12, TMP+13, TMP+14, TMP+16
ACC = 96
def acc(u, t): return ACC + 32*u + 16*t
vPFD, vTR = 255, 62
WF, XF = 196, 232
ACC2, HB, NB = 96, 160, 8
def hb(n): return HB + 8*(n % NB)
def w2reg(n, c2):
    if n < 32: return ("a", 8*n + 4*c2)
    return ("v", (224 + 8*(n-32) if n < 36 else 80 + 8*(n-36)) + 4*c2)
def v(b, n=1): return f"v{b}" if n == 1 else f"v[{b}:{b+n-1}]"
def a(b, n=1): return f"a{b}" if n == 1 else f"a[{b}:{b+n-1}]"
LOG2E = 0x3fb8aa3b; LN2 = 0x3f317218
def f2u(x): return struct.unpack("<I", struct.pack("<f", x))[0]
MF32 = "v_mfma_f32_32x32x16_bf16"

class Opt: pass
OPT = Opt()
DEFAULTS = dict(stamps=False, trace=False, spin=20000, code_pf=True, pf_lines=3, rot1=0, rot2=1, diag=None, diag_n=0, map2=0, slowfix=1,
    c_vm4=2, c_vm2=2, c_dsw=3, c_s=0.6, c_bar=5, budget=6, lead=36, crit=18, ta_line=0.22, lat_st=28, st_extra=3, ta_ahead=1.0, ta_init=-6, lat=18,
    tail_ahead=4, tail_pri=6, tail_low=2, tail_mid=3, tail_ta=0.29, pre_items=1, cs_early=1, cs_after=2, cs_lines=5, cs_delay=0, cp_delay=6,
    touch=7, gran_after=11, prep_at=265, cp_poll_at=150, nv2=[0, 2], v2_from=10, v2_every=2,
    flag_delay=14, tail_flag_delay=10, kv_poll_at=95, kv_poll_wait=16, kv_ahead=3, poll_chunk=16, out_flag="sc1")

def cost(ins):
    k = ins.kind
    if k == "vmem": return OPT.c_vm4 if "x4" in ins.mn else OPT.c_vm2
    if k == "trans": return 2
    if k == "ds": return OPT.c_dsw if ins.mn.startswith("ds_write_b128") else 1
    if k == "nop": return ins.states
    if ins.mn == "s_barrier": return OPT.c_bar
    if k in ("salu", "ctl", "smem"): return OPT.c_s
    return 1

class Gate:
    def __init__(self, fn): self.fn = fn

class Gen:
    STREG = [100, 98, 18, 22, 4, 16, 20, 80, 84, 82, 96]
    def __init__(self):
        self.s = Stream(); self.s.costfn = cost
        self.tailblocks = []; self.log = []; self.ntr = 0
    def stamp(self, i):
        if not OPT.stamps: return
        r = self.STREG[i]
        self.s(f"{'s_memtime' if OPT.stamps == 'cyc' else 's_memrealtime'} s[{r}:{r+1}]")
    def tr(self):
        if not OPT.trace: return
        k = self.ntr; self.ntr += 1
        if 0 < k <= 128: self.s(f"v_writelane_b32 v{vTR + (k-1)//64}, s98, {(k-1) % 64}")
        self.s("s_memtime s[98:99]")
    def stamp_flush(self):
        s = self.s
        if not (OPT.stamps or OPT.trace): return
        s("s_waitcnt lgkmcnt(0)")
        s(f"s_lshl_b32 s{sT0}, s2, 2\ns_add_u32 s{sT0}, s{sT0}, s{sW}\ns_lshl_b32 s{sT0}, s{sT0}, {9 if OPT.trace else 8}\ns_add_u32 s{sT0}, s{sT0}, {STAMP - (0x40000 if OPT.trace else 0)}")
        if OPT.trace:
            s(f"v_lshlrev_b32 v64, 2, v{vL}")
            s(f"buffer_store_dword v{vTR}, v64, {srd(SS)}, s{sT0} offen\nbuffer_store_dword v{vTR+1}, v64, {srd(SS)}, s{sT0} offen offset:256")
            return
        s("s_mov_b64 exec, 1")
        for i, r in enumerate(self.STREG):
            s(f"v_mov_b32 v{64+i}, s{r}\nbuffer_store_dword v{64+i}, off, {srd(SS)}, s{sT0} offset:{4*i}")
    def check(self, pairs, reloads, name, t=vCK):
        s = self.s
        seq = []
        for i, (r, e) in enumerate(pairs):
            seq.append(f"v_xor_b32 v{t}, {e}, v{r}" if i == 0 else f"v_bitop3_b32 v{t}, v{t}, v{r}, {e} bitop3:0xf6")
        lr, lb = f"L_retry_{name}", f"L_back_{name}"
        for x in seq:
            s(x); yield
        s(f"v_cmp_ne_u32 vcc, 0, v{t}")
        s(f"s_cbranch_vccnz {lr}")
        s.label(lb)
        b = Stream()
        b.label(lr)
        b(f"s_mov_b32 s{sCNT}, {OPT.spin}")
        b.label(lr + "_loop")
        b("s_nop 4")
        for x in reloads: b(x)
        b("s_waitcnt vmcnt(0)")
        for x in seq: b(x)
        b(f"v_cmp_ne_u32 vcc, 0, v{t}")
        b(f"s_cbranch_vccz {lb}")
        b(f"s_sub_u32 s{sCNT}, s{sCNT}, 1\ns_cmp_lg_u32 s{sCNT}, 0")
        b(f"s_cbranch_scc1 {lr}_loop")
        b(f"s_branch {lb}")
        self.tailblocks.append(b.text())
        yield

    def prologue(self):
        s = self.s; T = TMP
        s("s_cmp_ge_u32 s2, 256")
        s("s_cbranch_scc1 L_exit")
        if OPT.diag == "fixed": s("s_memrealtime s[100:101]")
        self.stamp(0)
        s("s_load_dwordx16 s[4:19], s[0:1], 0")
        s("s_load_dwordx2 s[22:23], s[0:1], 72")
        s(f"v_lshrrev_b32 v{vDT}, 6, v0\nv_and_b32 v{vL}, 63, v0\nv_readfirstlane_b32 s{sW}, v{vDT}")
        s(f"s_lshr_b32 s{sT0}, s2, 3")
        if OPT.code_pf:
            s(f"s_getpc_b64 s[{sST}:{sST+1}]")
            s(f"s_lshl_b32 s{sT1}, s{sT0}, 2\ns_add_u32 s{sT1}, s{sT1}, s{sW}\ns_mul_i32 s{sT1}, s{sT1}, {OPT.pf_lines*128}")
            s(f"v_min_u32 v{vDT}, {OPT.pf_lines-1}, v{vL}\nv_lshl_add_u32 v{vDT}, v{vDT}, 7, s{sT1}")
            s(f"v_min_u32 v{vDT}, L_codeend-{NAME}-256, v{vDT}")
            s(f"global_load_dword v{vPFD}, v{vDT}, s[{sST}:{sST+1}]")
        s(f"s_lshl_b32 s{sMW}, s{sW}, 12")
        s(f"s_and_b32 s{sRB}, s2, 1\ns_lshl_b32 s{sRB}, s{sRB}, 3\ns_and_b32 s{sT1}, s{sT0}, 7\ns_or_b32 s{sRB}, s{sRB}, s{sT1}")
        s(f"s_and_b32 s{sJ}, s2, 6\ns_bfe_u32 s{sT1}, s{sT0}, 0x10003\ns_or_b32 s{sJ}, s{sJ}, s{sT1}")
        if OPT.rot1: s(f"s_xor_b32 s{sE2}, s{sT1}, s{sT0}\ns_and_b32 s{sE2}, s{sE2}, 1")
        else: s(f"s_mov_b32 s{sE2}, 0")
        s(f"v_lshrrev_b32 v{T}, 3, v{vL}\nv_and_b32 v{T+1}, 7, v{vL}\nv_lshrrev_b32 v{T+2}, 4, v{vL}")
        s(f"v_xor_b32 v{T+3}, v{T+1}, v{T+2}\nv_lshlrev_b32 v{T+3}, 4, v{T+3}\nv_lshl_add_u32 v{VX}, v{T}, 10, v{T+3}")
        s(f"v_xor_b32 v{VX+1}, 64, v{VX}\nv_add_u32 v{VX+1}, 7168, v{VX+1}\nv_add_u32 v{VX+2}, {2*7168}, v{VX}\nv_add_u32 v{VX+3}, {2*7168}, v{VX+1}")
        s(f"v_lshrrev_b32 v{T+4}, 5, v{vL}\nv_and_b32 v{T+5}, 31, v{vL}\nv_lshlrev_b32 v{T+5}, 4, v{T+5}\nv_lshl_add_u32 v{T+5}, v{T+4}, 10, v{T+5}")
        s(f"s_lshr_b32 s{sT2}, s{sT0}, 4\ns_lshl_b32 s{sT2}, s{sT2}, 3\ns_add_u32 s{sT2}, s{sT2}, s{sJ}\ns_lshl_b32 s{sT2}, s{sT2}, 2\ns_add_u32 s{sT2}, s{sT2}, s{sW}\ns_lshl_b32 s{sT2}, s{sT2}, 1")
        s(f"s_lshl_b32 s{sT3}, s{sRB}, 7\ns_add_u32 s{sT2}, s{sT2}, s{sT3}\ns_lshl_b32 s{sOF}, s{sT2}, 10")
        s(f"s_lshl_b32 s{sOX}, s{sW}, 5\ns_add_u32 s{sOX}, s{sOX}, s{sT3}\ns_lshl_b32 s{sOX}, s{sOX}, 10\ns_lshl_b32 s{sT3}, s{sE2}, 9\ns_add_u32 s{sOX}, s{sOX}, s{sT3}")
        s(f"s_lshl_b32 s{sT3}, s{sE2}, 5\ns_add_u32 s{sT3}, s{sT3}, s{sW}\ns_mul_i32 s{sO1}, s{sT3}, {8*3584}\ns_mul_i32 s{sO3}, s{sT3}, {8*3072}")
        s(f"s_lshl_b32 s{sT3}, s{sJ}, 7\ns_add_u32 s{sO3}, s{sO3}, s{sT3}\ns_mul_i32 s{sT3}, s{sT3}, 3\ns_add_u32 s{sO1}, s{sO1}, s{sT3}")
        s(f"v_and_b32 v{T+2}, 1, v{T+2}\nv_lshlrev_b32 v{T+2}, 2, v{T+2}\nv_xor_b32 v{T+2}, v{T+2}, v{T+1}\nv_lshlrev_b32 v{T+2}, 4, v{T+2}")
        s(f"v_mul_u32_u24 v{WV}, 3584, v{T}\nv_add_u32 v{WV}, v{WV}, v{T+2}\nv_xor_b32 v{WV+1}, 32, v{WV}\nv_mul_u32_u24 v{WV+2}, 3072, v{T}\nv_add_u32 v{WV+2}, v{WV+2}, v{T+2}")
        s(f"v_and_b32 v{vDT}, 3, v{vL}\nv_lshlrev_b32 v{vDT}, 4, v{vDT}\nv_lshrrev_b32 v{WV+3}, 2, v{vL}\nv_mul_u32_u24 v{WV+3}, 3584, v{WV+3}\nv_add_u32 v{WV+3}, v{WV+3}, v{vDT}")
        s(f"s_lshl_b32 s{sT3}, s{sE2}, 4\ns_lshr_b32 s{sT1}, s{sW}, 1\ns_add_u32 s{sT3}, s{sT3}, s{sT1}\ns_mul_i32 s{sO4}, s{sT3}, {16*3584}\ns_lshl_b32 s{sT3}, s{sJ}, 6\ns_add_u32 s{sO4}, s{sO4}, s{sT3}\ns_add_u32 s{sO4}, s{sO4}, 3072")
        s(f"s_and_b32 s{sCH}, s{sW}, 1\ns_lshl_b32 s{sMH}, s{sCH}, 1\ns_add_u32 s{sMH}, s{sMH}, s{sT1}\ns_lshl_b32 s{sMH}, s{sMH}, 10\ns_lshl_b32 s{sT1}, s{sCH}, 5\nv_xor_b32 v{WV+3}, s{sT1}, v{WV+3}")
        for n, size in ((SX, 0x200000), (SF, 1835008), (SG, 1835008), (SU, 1835008), (SQ, 1572864)): s(f"s_mov_b32 s{n+2}, {size}\ns_mov_b32 s{n+3}, 0x20000")
        s(f"s_mov_b32 m0, s{sMW}\ns_cmp_eq_u32 s{sCH}, 0")
        s("s_waitcnt lgkmcnt(0)")
        s(f"s_mov_b64 s[{SX}:{SX+1}], s[4:5]")
        for n in range(4): self.x0last = s(f"buffer_load_dwordx4 v{VX+n}, {srd(SX)}, s{sOX} offen offset:{n*1024} lds")
        s(f"s_mov_b64 s[{SG}:{SG+1}], s[12:13]\ns_mov_b64 s[{SU}:{SU+1}], s[14:15]\ns_mov_b64 s[{SQ}:{SQ+1}], s[6:7]")
        s(f"s_cselect_b64 s[{SF}:{SF+1}], s[12:13], s[14:15]\ns_lshl_b32 s{sM1}, s{sW}, 10\ns_mov_b32 s{sROT}, s{sE2}\ns_cmp_ge_u32 s{sT0}, 16")
        s(f"s_load_dword s{sEP}, s[22:23], {EPOCH}")
        s("s_cbranch_scc1 L_q0")
        nvm0 = s.nvm
        s(f"s_add_u32 s{sO1}, s{sO1}, 256\ns_add_u32 s{sO2}, s{sO3}, 1024\ns_add_u32 s{sO3}, s{sO3}, 2048")
        for _ in self.w_item("H", WS[0]): pass
        s("s_branch L_c2")
        s.label("L_q0")
        s.nvm = nvm0
        s(f"s_add_u32 s{sO2}, s{sO1}, 128")
        for _ in self.w_item("Q", WS[0]): pass
        s.label("L_c2")
        self.w0last = self.wlast
        self.ld_st = [s(f"buffer_load_dwordx4 {v(T+24,4)}, v{T+5}, {srd(SX)}, s{sOF} offen"),
                      s(f"buffer_load_dwordx4 {v(T+28,4)}, v{T+5}, {srd(SX)}, s{sOF} offen offset:512")]
        self.stamp(1)
        s(f"s_add_u32 s{sOX}, s{sOX}, 128\ns_lshl_b32 s{sT2}, s{sT2}, 3\ns_add_u32 s{sDT}, s{sT2}, {STATS}")
        s(f"v_lshlrev_b32 v{vL16}, 4, v{vL}\ns_lshr_b32 s{sTG}, s{sW}, 1")
        self.piece()
        s(f"v_lshl_add_u32 v{vDW}, v{TMP}, 10, v{TMP+2}")
        if OPT.slowfix:
            s(f"s_lshl_b32 s{sE2}, s{sW}, 8\ns_add_u32 s{sE2}, s{sE2}, s2\ns_lshr_b32 s{sR4}, s16, 7\ns_sub_u32 s{sR4}, 3, s{sR4}\ns_and_b32 s{sR4}, s{sR4}, 7")
            s(f"s_sub_u32 s{sT1}, s{sE2}, 224\ns_cmp_lt_u32 s{sE2}, 224\ns_cselect_b64 s[{SO}:{SO+1}], s[16:17], s[8:9]\ns_cselect_b32 s{sT1}, s{sE2}, s{sT1}\ns_mov_b32 s{SO+2}, 524288\ns_cselect_b32 s{SO+2}, 1835008, s{SO+2}\ns_mov_b32 s{SO+3}, 0x20000")
            s(f"s_lshl_b32 s{sT1}, s{sT1}, 13\ns_lshl_b32 s{sT3}, s{sR4}, 7\ns_add_u32 s{sT1}, s{sT1}, s{sT3}")
            self.ld_cp = s(f"buffer_load_dwordx4 {v(TMP+20,4)}, v{vDW}, {srd(SO)}, s{sT1} offen")
        for n, p, size in ((SS, 22, SMALL), (SO, 18, 0x200000)):
            s(f"s_mov_b64 s[{n}:{n+1}], s[{p}:{p+1}]\ns_mov_b32 s{n+2}, {size}\ns_mov_b32 s{n+3}, 0x20000")
        self.common_setup()
        s(f"s_cmp_ge_u32 s{sT0}, 16")
        s("s_cbranch_scc1 L_typeQ")

    def w_item(self, typ, base):
        s = self.s
        if typ == "H": L = [(WV, SG, sO1, 0, None), (WV+1, SU, sO1, 1, 32*3584), (WV+2, SQ, sO2, 2, 32*3072), (WV+2, SQ, sO3, 3, 32*3072), (WV+3, SF, sO4, 4, 32*3584)]
        else: L = [(WV, SG, sO1, 0, None), (WV+1, SU, sO1, 1, 32*3584), (WV, SG, sO2, 2, None), (WV+1, SU, sO2, 3, 32*3584), (WV+2, SQ, sO3, 4, 32*3072)]
        pend = None
        for vo, sr_, so, l, step in L:
            s(f"s_add_u32 m0, s{sMH if sr_ == SF else sM1}, {base + l*4096}")
            if pend: s(pend); pend = None
            self.wlast = s(f"buffer_load_dwordx4 v{vo}, {srd(sr_)}, s{so} offen lds")
            if sr_ == SF: self.wlast.lines = 16
            if step: pend = f"s_add_u32 s{so}, s{so}, {step}"
            if l == 4: s(pend)
            yield "d"

    def piece(self):
        s = self.s
        lc, A, B, Cc, Dd = sHB, sOW2, sFA, sHA, sPO
        s(f"s_and_b32 s{sT1}, s2, 1\ns_lshl_b32 s{sT1}, s{sT1}, 5\ns_add_u32 s{sT1}, s{sT1}, s{sT0}")
        s(f"s_mul_i32 s{lc}, s{sT1}, 43691\ns_lshr_b32 s{lc}, s{lc}, 17")
        s(f"s_mul_i32 s{sPS}, s{lc}, 3\ns_sub_u32 s{sT1}, s{sT1}, s{sPS}")
        s(f"s_lshr_b32 s{A}, s{lc}, 1\ns_add_u32 s{A}, s{A}, 1\ns_cmp_eq_u32 s{A}, 3\ns_cselect_b32 s{A}, 0, s{A}\ns_lshl_b32 s{A}, s{A}, 3")
        s(f"s_and_b32 s{B}, s2, 6\ns_add_u32 s{A}, s{A}, s{B}\ns_and_b32 s{Cc}, s{lc}, 1\ns_add_u32 s{A}, s{A}, s{Cc}")
        s(f"s_cmp_ge_u32 s{lc}, 13\ns_cselect_b32 s{Cc}, 13, 6\ns_cselect_b32 s{sPS}, 52, 24\ns_cselect_b64 s[{SC}:{SC+1}], s[{SU}:{SU+1}], s[{SG}:{SG+1}]\ns_sub_u32 s{Cc}, s{lc}, s{Cc}")
        s(f"s_mul_i32 s{Dd}, s{B}, 3\ns_add_u32 s{Dd}, s{Dd}, s{Cc}\ns_lshr_b32 s{B}, s{B}, 1\ns_add_u32 s{B}, s{B}, 24")
        s(f"s_cmp_eq_u32 s{Cc}, 6\ns_cselect_b32 s{B}, s{B}, s{Dd}\ns_add_u32 s{Cc}, s{sPS}, s{B}")
        s(f"s_cmp_lt_u32 s{lc}, 6\ns_mov_b32 s{SC+2}, 1835008\ns_cselect_b32 s{SC+2}, 1572864, s{SC+2}\ns_cselect_b64 s[{SC}:{SC+1}], s[{SQ}:{SQ+1}], s[{SC}:{SC+1}]")
        s(f"s_cselect_b32 s{Cc}, s{A}, s{Cc}\ns_cselect_b32 s{B}, s{A}, s{B}\ns_movk_i32 s{A}, 3584\ns_cselect_b32 s{A}, 3072, s{A}\ns_mov_b32 s{SC+3}, 0x20000")
        s(f"s_lshl_b32 s{sPP}, s{A}, 3")
        s(f"s_lshl_b32 s{Dd}, s{sT1}, 2\ns_add_u32 s{Dd}, s{Dd}, s{sW}\ns_mul_i32 s{Dd}, s{Dd}, 6\ns_mul_i32 s{sPO}, s{Dd}, s{sPP}")
        s(f"s_lshl_b32 s{B}, s{B}, 7\ns_add_u32 s{sPO}, s{sPO}, s{B}")
        s(f"s_lshl_b32 s{sPS}, s{Cc}, 11\ns_lshl_b32 s{sT1}, s{sT1}, 3\ns_add_u32 s{sPS}, s{sPS}, s{sT1}\ns_add_u32 s{sPS}, s{sPS}, {COLSUM}")
        s(f"s_cmp_lg_u32 s{sW}, 0\ns_cselect_b32 s{sPS}, {OOB}, s{sPS}")
        s(f"s_cmp_ge_u32 s{lc}, 20\ns_cselect_b32 s{sPS}, {OOB}, s{sPS}\ns_cselect_b32 s{sPO}, {OOB}, s{sPO}")
        s(f"s_cmp_ge_u32 s{sT1}, {8*OPT.cs_early}\ns_cselect_b32 s{sCL}, s{sPO}, {OOB}\ns_cselect_b32 s{sPO}, {OOB}, s{sPO}")
        s(f"v_lshlrev_b32 v{vCV}, 4, v{TMP+1}\nv_mad_u32_u24 v{vCV}, v{TMP}, s{A}, v{vCV}")
        s(f"s_cbranch_scc1 L_nocs")
        for n in range(6):
            s(f"buffer_load_dwordx4 {v(CS+4*n,4)}, v{vCV}, {srd(SC)}, s{sPO} offen")
            if n < 5: s(f"s_add_u32 s{sPO}, s{sPO}, s{sPP}")
        s.nvm -= 6; del s.vmlog[-6:]
        s.label("L_nocs")

    def rdpattern(self, kind, D):
        T, U = vBT, vDT
        o = [f"v_bfe_u32 v{T}, v{vL}, 2, 2", f"v_lshrrev_b32 v{U}, 5, v{vL}", f"v_lshl_add_u32 v{T}, v{U}, {2 if kind == 'w2' else 3}, v{T}"]
        if kind == "half":
            o += [f"v_lshlrev_b32 v{D}, 6, v{T}", f"v_bfe_u32 v{T}, v{vL}, 4, 1", f"v_lshl_add_u32 v{D}, v{T}, 11, v{D}",
                  f"v_xor_b32 v{T}, s{sCH}, v{T}", f"v_lshl_add_u32 v{D}, v{T}, 5, v{D}"]
        else:
            o += [f"v_lshlrev_b32 v{D}, 7, v{T}", f"v_and_b32 v{T}, 2, v{T}", f"v_bfe_u32 v{U}, v{vL}, 4, 1", f"v_xor_b32 v{T}, v{T}, v{U}"]
            if kind == "glu": o += [f"v_lshl_add_u32 v{D}, v{U}, 12, v{D}"]
            if kind != "w2": o += [f"s_lshl_b32 s{sBT}, s{sCH}, 1", f"v_xor_b32 v{T}, s{sBT}, v{T}"]
            o += [f"v_lshl_add_u32 v{D}, v{T}, 5, v{D}"]
        o += [f"v_and_b32 v{T}, 3, v{vL}", f"v_lshl_add_u32 v{D}, v{T}, 3, v{D}"]
        if kind == "w2": o += [f"v_add_u32 v{D}, s{sMW}, v{D}"]
        return o

    def common_setup(self):
        s = self.s; T = vLT
        L = [f"s_cmp_eq_u32 s{sW}, 0", f"s_cselect_b64 s[{sTP}:{sTP+1}], s[8:9], s[16:17]",
             f"s_cselect_b32 s{sT2}, 1, s{sW}", f"s_cselect_b64 s[{sW0X}:{sW0X+1}], -1, 1", f"s_sub_u32 s{sT2}, s{sT2}, 1", f"s_mul_i32 s{sT2}, s{sT2}, 19",
             f"s_add_u32 s{SH}, s22, {H_OFF}", f"s_addc_u32 s{SH+1}, s23, 0", f"s_mov_b32 s{SH+2}, {H_BYTES}", f"s_mov_b32 s{SH+3}, 0x20000",
             *([f"s_and_b32 s{sTB}, s2, 7", f"s_lshl_b32 s{sTB}, s{sTB}, 2", f"s_and_b32 s{sT3}, s{sT0}, 3", f"s_or_b32 s{sTB}, s{sTB}, s{sT3}", f"s_lshr_b32 s{sCT}, s2, 5"] if OPT.map2 == 0 else
               [f"s_and_b32 s{sTB}, s2, 6", f"s_lshl_b32 s{sTB}, s{sTB}, 2", f"s_and_b32 s{sT3}, s{sT0}, 7", f"s_or_b32 s{sTB}, s{sTB}, s{sT3}",
                f"s_and_b32 s{sCT}, s2, 1", f"s_lshl_b32 s{sCT}, s{sCT}, 2", f"s_lshr_b32 s{sT3}, s{sT0}, 3", f"s_or_b32 s{sCT}, s{sCT}, s{sT3}"]),
             f"s_cmp_eq_u32 s{sW}, 3", f"s_cselect_b32 s{sT1}, 18, 19", f"s_cselect_b32 s{sO18}, {OOB}, 0",
             f"s_cmp_eq_u32 s{sW}, 0", f"s_cselect_b32 s{sT1}, 16, s{sT1}", f"s_cselect_b32 s{sO16}, {OOB}, 0", f"s_cselect_b32 s{sHA}, 56, s{sT2}",
             *([f"s_lshr_b32 s{sT3}, s{sT0}, {3 if OPT.map2 else 2}", f"s_xor_b32 s{sT3}, s{sT3}, s{sT0}", f"s_and_b32 s{sT3}, s{sT3}, 1"] if OPT.rot2 else [f"s_mov_b32 s{sT3}, 0"]),
             f"s_mul_i32 s{sWR}, s{sT1}, s{sT3}", f"s_sub_u32 s{sT1}, s{sT1}, 9", f"s_mul_i32 s{sT1}, s{sT1}, s{sT3}",
             f"s_lshl_b32 s{sHR}, s{sWR}, 12", f"s_add_u32 s{sHA}, s{sHA}, s{sT1}", f"s_mov_b32 s{sHB}, s{sHA}", f"s_lshl_b32 s{sHA}, s{sHA}, 12",
             f"s_mul_i32 s{sT3}, s{sTB}, {TBB}", f"s_add_u32 s{sHA}, s{sHA}, s{sT3}",
             f"s_add_u32 s{sOW2}, s{sT2}, s{sT1}", f"s_lshl_b32 s{sOW2}, s{sOW2}, 15", f"s_lshl_b32 s{sT3}, s{sCT}, 7", f"s_add_u32 s{sOW2}, s{sOW2}, s{sT3}",
             f"s_mov_b32 s{sC2}, 32768", f"s_movk_i32 s{sH36}, 7168",
             *([f"s_lshl_b32 s{sHB}, s{sHB}, 12",
                f"s_cmp_eq_u32 s{sCT}, s{sR4}",
                f"s_cselect_b32 s{sOW2}, s{sHB}, s{sOW2}", f"s_cselect_b32 s{sC2}, 4096, s{sC2}", f"s_cselect_b32 s{sH36}, 0, s{sH36}", f"s_cselect_b64 vcc, -1, 0", f"s_cselect_b32 s{sR4}, -1, 0",
                f"v_cndmask_b32 v{vDW}, v{vDW}, v{vL16}, vcc",
                f"s_lshl_b32 s{sCPO}, s{sE2}, 10", f"s_add_u32 s{sCPO}, s{sCPO}, {W2C}", f"s_cmp_lt_u32 s{sE2}, 288", f"s_cselect_b64 s[{sCPX}:{sCPX+1}], -1, 1", f"s_cselect_b32 s{sCPO}, s{sCPO}, {OOB}",
                f"s_cselect_b32 s{sE2}, s{sE2}, {OOB//4}", f"s_lshl_b32 s{sE2}, s{sE2}, 2", f"s_add_u32 s{sE2}, s{sE2}, {CPFLAG}"]
               if OPT.slowfix else [f"s_mov_b32 s{sR4}, 0"]),
             f"s_mul_i32 s{sWR}, s{sWR}, s{sC2}",
             f"s_lshl_b32 s{sFA}, s{sTB}, 8", f"s_add_u32 s{sT2}, s{sFA}, {FLAGA+128}", f"s_add_u32 s{sFA}, s{sFA}, {FLAGB}",
             f"s_cmp_eq_u32 s{sW}, 0", f"s_cselect_b32 s{sFA}, s{sT2}, s{sFA}",
             f"s_lshl_b32 s{sT1}, s{sRB}, 1", f"s_add_u32 s{sT1}, s{sT1}, s{sTG}", f"s_mul_i32 s{sOH}, s{sT1}, {TBB}",
             f"s_lshl_b32 s{sOF}, s{sT1}, 5", f"s_lshl_b32 s{sT2}, s{sJ}, 1", f"s_add_u32 s{sT2}, s{sT2}, s{sCH}", f"s_add_u32 s{sOF}, s{sOF}, s{sT2}",
             f"s_and_b32 s{sT3}, s{sT0}, 16", f"s_add_u32 s{sOF}, s{sOF}, s{sT3}", f"s_lshl_b32 s{sOF}, s{sOF}, 3",
             f"s_lshl_b32 s{sT2}, s{sT2}, 1", f"s_add_u32 s{sKV}, s{sT2}, s{sTG}",
             f"v_lshrrev_b32 v{T}, 5, v{vL}", f"v_and_b32 v{vQ0}, 31, v{vL}", f"v_lshlrev_b32 v{vQ0}, 5, v{vQ0}", f"v_lshl_add_u32 v{vQ0}, v{T}, 4, v{vQ0}",
             f"v_and_b32 v{vG0}, 0x1ff, v{vQ0}", f"v_bfe_u32 v{T}, v{vL}, 4, 1", f"v_mul_u32_u24 v{T}, {28*2048}, v{T}", f"v_add_u32 v{vG0}, v{vG0}, v{T}",
             f"s_lshl_b32 s{sT1}, s{sT1}, 9", f"s_add_u32 s{sT1}, s{sT1}, {STATS}", f"v_lshl_add_u32 v{vSV}, v{vL}, 3, s{sT1}"]
        L += self.rdpattern("glu", WA) + [f"v_add_u32 v{WA}, {WS[0]}, v{WA}", f"v_xor_b32 v{WA+1}, 32, v{WA}"]
        L += self.rdpattern("q", WA+2) + [f"v_add_u32 v{WA+2}, {WS[0]}, v{WA+2}"]
        L += self.rdpattern("w2", W2A) + [f"v_add_u32 v{W2A}, {8*SLOT}, v{W2A}", f"v_xor_b32 v{W2A+1}, 64, v{W2A}"]
        L += [f"v_and_b32 v{XA}, 31, v{vL}", f"s_lshl_b32 s{sT3}, s{sTG}, 6", f"v_add_u32 v{XA}, s{sT3}, v{XA}", f"v_lshlrev_b32 v{XA}, 7, v{XA}",
              f"v_lshrrev_b32 v{T}, 5, v{vL}", f"v_bfe_u32 v{XA+1}, v{vL}, 1, 3", f"v_xor_b32 v{T}, v{T}, v{XA+1}", f"v_lshl_add_u32 v{XA}, v{T}, 4, v{XA}"]
        L += [f"v_xor_b32 v{XA+q}, {32*q}, v{XA}" for q in (1, 2, 3)]
        if OPT.touch is not None:
            L += [f"s_mul_i32 s{sT3}, s2, 3", f"s_add_u32 s{sT3}, s{sT3}, s{sW}", f"s_sub_u32 s{sT3}, s{sT3}, 1", f"s_mul_i32 s{sT3}, s{sT3}, 19", f"s_lshl_b32 s{sBT}, s2, 4",
                  f"s_cmp_eq_u32 s{sW}, 0", f"s_cselect_b32 s{sT3}, s{sBT}, s{sT3}", f"s_cselect_b32 s{sBT}, 15, 18",
                  f"v_min_u32 v{MF}, s{sBT}, v{vL}", f"v_add_u32 v{MF}, s{sT3}, v{MF}", f"v_min_u32 v{MF}, 14335, v{MF}", f"v_lshlrev_b32 v{MF}, 7, v{MF}"]
        for t in L: s(t)

    def type_setup(self, typ):
        s = self.s; T = vLT
        if typ == "Q":
            L = [f"s_mul_i32 s{sCS}, s{sJ}, {3*2048}", f"s_lshl_b32 s{sT1}, s{sCH}, 10", f"s_add_u32 s{sCS}, s{sCS}, s{sT1}", f"s_add_u32 s{sCS}, s{sCS}, {COLSUM+24*2048}",
                 f"s_lshl_b32 s{sCS+1}, s{sJ}, 11", f"s_add_u32 s{sCS+1}, s{sCS+1}, s{sT1}", f"s_add_u32 s{sCS+1}, s{sCS+1}, {COLSUM}",
                 f"s_lshl_b32 s{sKF}, s{sKV}, 7", f"s_add_u32 s{sKF}, s{sKF}, {KVFLAG}", f"s_mul_i32 s{sKV}, s{sKV}, {16*KVS}", f"s_add_u32 s{sKV}, s{sKV}, {KV}",
                 f"s_or_b32 s{sT3}, s{sRB}, s{sJ}", f"s_or_b32 s{sT3}, s{sT3}, s{sW}", f"s_cmp_eq_u32 s{sT3}, 0", f"s_cselect_b32 s{sEO}, {EPOCH}, {OOB}"]
            L += [f"v_mov_b32 v{KF}, 0x3f80", f"v_and_b32 v{T}, 1, v{vL}", f"v_lshlrev_b32 v{T}, 4, v{T}", f"v_lshlrev_b32 v{T}, v{T}, v{KF}",
                  f"v_lshrrev_b32 v{KF}, 3, v{vL}", f"v_xor_b32 v{KF}, v{KF}, v{vL}", f"v_and_b32 v{KF}, 4, v{KF}", f"v_and_b32 v{KF+1}, 16, v{vL}", f"v_or_b32 v{KF}, v{KF}, v{KF+1}",
                  f"v_bfe_u32 v{KF+1}, v{vL}, 1, 1", f"v_or_b32 v{KF}, v{KF}, v{KF+1}", f"v_bfe_u32 v{KF+1}, v{vL}, 3, 1", f"v_lshl_or_b32 v{KF+3}, v{KF+1}, 1, v{KF}"]
            for i in range(4): L += [f"v_cmp_eq_u32 vcc, {i}, v{KF+3}", f"v_cndmask_b32 v{KF+i}, 0, v{T}, vcc"]
            gl = [(vG0, sCS, 0), (vG0, sCS, 512), (vG0, sCS, 2048), (vG0, sCS, 2560), (vQ0, sCS+1, 0)]
        else:
            L = [f"s_lshl_b32 s{sCS}, s{sJ}, 11", f"s_lshl_b32 s{sT1}, s{sCH}, 10", f"s_add_u32 s{sCS}, s{sCS}, s{sT1}", f"s_add_u32 s{sCS+1}, s{sCS}, {COLSUM+16*2048}", f"s_add_u32 s{sCS}, s{sCS}, {COLSUM+8*2048}",
                 f"s_mul_i32 s{sCS+2}, s{sJ}, {3*2048}", f"s_add_u32 s{sCS+2}, s{sCS+2}, s{sT1}", f"s_add_u32 s{sCS+2}, s{sCS+2}, {COLSUM+26*2048}",
                 f"s_lshr_b32 s{sCS+3}, s{sJ}, 1", f"s_lshl_b32 s{sCS+3}, s{sCS+3}, 11", f"s_and_b32 s{sT1}, s{sJ}, 1", f"s_lshl_b32 s{sT1}, s{sT1}, 1", f"s_add_u32 s{sT1}, s{sT1}, s{sCH}", f"s_lshl_b32 s{sT1}, s{sT1}, 9",
                 f"s_add_u32 s{sCS+3}, s{sCS+3}, s{sT1}", f"s_add_u32 s{sCS+3}, s{sCS+3}, {COLSUM+48*2048}",
                 f"s_lshl_b32 s{sKV}, s{sKV}, 4", f"s_add_u32 s{sKV}, s{sKV}, s{sRB}", f"s_lshl_b32 s{sKF}, s{sKV}, 3", f"s_add_u32 s{sKF}, s{sKF}, {KVFLAG}",
                 f"s_mul_i32 s{sKV}, s{sKV}, {KVS}", f"s_add_u32 s{sKV}, s{sKV}, {KV}",
                 f"s_mov_b32 s{sMK}, 0xffff0000", f"s_mov_b32 s{sMK+1}, 0xffff0000"]
            L += self.rdpattern("half", WA+3) + [f"v_add_u32 v{WA+3}, {WS[0]}, v{WA+3}"]
            L += [f"v_mov_b32 v{KF+i}, 0x3f803f80" for i in range(4)]
            gl = [(vQ0, sCS, 0), (vQ0, sCS+1, 0), (vG0, sCS+2, 0), (vG0, sCS+2, 512), (vG0, sCS+3, 0)]
        for t in L: s(t)
        self.gran_loads = [f"buffer_load_dwordx2 {v(ST,2)}, v{vSV}, {srd(SS)}, 0 offen sc1"] + [
            f"buffer_load_dwordx4 {v(CS+4*u,4)}, v{r}, {srd(SS)}, s{so} offen offset:{im} sc1" for u, (r, so, im) in enumerate(gl)]

    def stats_compute(self):
        s = self.s; T = TMP
        s(f"v_mov_b32 v{T}, 0\nv_mov_b32 v{T+1}, 0\nv_mov_b32 v{T+2}, 0x3f803f80")
        s.wait(vm=self.ld_st[1])
        self.stamp(2)
        for i in range(8): s(f"v_dot2c_f32_bf16 v{T}, v{T+24+i}, v{T+2}\nv_dot2c_f32_bf16 v{T+1}, v{T+24+i}, v{T+24+i}")
        for d in ("row_shr:1", "row_shr:2", "row_shr:4", "row_shr:8", "row_bcast:15 row_mask:0xa"):
            for r in (T, T+1):
                s(f"v_add_f32 v{r}, v{r}, v{r} {d}" + ("" if "mask" in d else " row_mask:0xf") + " bank_mask:0xf" + (" bound_ctrl:1" if "shr" in d else ""))
        s(f"v_mul_f32 v{T}, {hex(f2u(1/512))}, v{T}\nv_mul_f32 v{T+1}, {hex(f2u(1/512))}, v{T+1}")
        s(f"v_fma_f32 v{T+1}, -v{T}, v{T}, v{T+1}\nv_max_f32 v{T+1}, 0, v{T+1}")
        s(f"v_cvt_pk_bf16_f32 v{T+2}, v{T}, v{T+1}")
        s(f"v_and_b32 v{T+1}, 0xffff0000, v{T+2}\nv_add_f32 v{T+1}, {hex(f2u(1e-5))}, v{T+1}")
        s(f"v_cvt_pk_bf16_f32 v{T+1}, v{T+1}, v{T+1}\nv_and_b32 v{T+1}, 0xffff0000, v{T+1}\nv_sqrt_f32 v{T+1}, v{T+1}")
        s(f"s_mov_b32 s{sT3}, 0xffff\nv_cvt_pk_bf16_f32 v{T+1}, v{T+1}, v{T+1}")
        s(f"v_lshlrev_b32 v{T+4}, 3, v{T+4}\nv_bfi_b32 v{T+2}, s{sT3}, v{T+2}, v{T+1}")
        s("s_waitcnt lgkmcnt(0)")
        s(f"s_mul_i32 s{sEP}, s{sEP}, 0x9E3779B1\ns_add_u32 s{sEP}, s{sEP}, 0x7F4A7C15\ns_and_b32 s{sTAG}, s{sEP}, 0xBFFFBFFF")
        s(f"v_mov_b32 v{T+3}, s{sTAG}")
        s("s_mov_b32 exec_lo, 0x80000000\ns_mov_b32 exec_hi, 0x80000000")
        s(f"buffer_store_dwordx2 {v(T+2,2)}, v{T+4}, {srd(SS)}, s{sDT} offen sc1")
        s("s_mov_b64 exec, -1")
    def cp_store(self):
        s = self.s
        if not OPT.slowfix: return
        s.wait(vm=self.ld_cp)
        s(f"s_mov_b64 exec, s[{sCPX}:{sCPX+1}]")
        self.st_cp = s(f"buffer_store_dwordx4 {v(TMP+20,4)}, v{vL16}, {srd(SS)}, s{sCPO} offen sc1"); self.st_cp.lines = 2
        s("s_mov_b64 exec, -1")
    def cp_poll(self):
        s = self.s
        yield Gate(lambda: self.slotno >= OPT.cp_poll_at)
        ad, ex, VX = TMP+17, TMP+18, TMP+20
        for x in (f"s_cmp_eq_u32 s{sW}, 0\ns_cselect_b32 s{sT3}, 31, 37\ns_cselect_b32 s{sBT}, 4, s{sW}", f"s_mul_i32 s{sBT}, s{sBT}, 304", f"s_add_u32 s{sBT}, s{sBT}, {CPFLAG-304}",
                  f"s_cmp_eq_u32 s{sW}, 0\ns_cselect_b32 s{sBT}, {CPFLAG+896}, s{sBT}", f"s_cmp_eq_u32 s{sW}, 3\ns_cselect_b32 s{sT3}, 35, s{sT3}",
                  f"v_min_u32 v{ad}, s{sT3}, v{vL}", f"v_lshlrev_b32 v{ad}, 3, v{ad}", f"s_andn2_b32 s{sT3}, {OOB}, s{sR4}", f"s_or_b32 s{sBT}, s{sBT}, s{sT3}",
                  f"s_and_b32 s{sT3}, s{sTAG}, s{sR4}", f"v_mov_b32 v{ex}, s{sT3}"): s(x); yield
        txt = f"buffer_load_dwordx2 {v(VX,2)}, v{ad}, {srd(SS)}, s{sBT} offen sc1"
        ld = s(txt); ld.lines = 1; yield
        yield self.after_slots(OPT.kv_poll_wait)
        s.wait(vm=ld); yield
        yield from self.check([(VX, f"v{ex}"), (VX+1, f"v{ex}")], [txt], "cp" + self.typ)
        self.cp_ok = True

    def colsum_task(self):
        s = self.s; R0 = CS; A = TMP+24; T = TMP
        nx = self.after_cs
        yield Gate(lambda: nx in self.last_of and getattr(self.last_of[nx], "land", 1e9) + OPT.cs_delay <= self.slotno)
        s.wait(vm=self.last_of[nx]); yield
        for n in range(6):
            for r in range(4):
                R = R0+4*n+r
                if n == 0:
                    s(f"v_lshlrev_b32 v{A+2*r}, 16, v{R}"); yield
                    s(f"v_and_b32 v{A+2*r+1}, 0xffff0000, v{R}"); yield
                else:
                    s(f"v_lshlrev_b32 v{T+r}, 16, v{R}"); yield
                    s(f"v_and_b32 v{R}, 0xffff0000, v{R}"); yield
                    s(f"v_add_f32 v{A+2*r}, v{A+2*r}, v{T+r}"); yield
                    s(f"v_add_f32 v{A+2*r+1}, v{A+2*r+1}, v{R}"); yield
        self.cs_consumed = True
        L = [f"v_permlane32_swap_b32 v{A+e}, v{A+e+4}" for e in range(4)]
        L += [f"v_and_b32 v{T}, 7, v{vL}", f"v_lshlrev_b32 v{T}, 3, v{T}"] + [f"v_add_f32 v{A+e}, v{A+e}, v{A+e+4}" for e in range(4)]
        L += [f"v_lshrrev_b32 v{T+1}, 3, v{vL}", f"v_or_b32 v{T}, v{T}, v{T+1}"] + [f"v_permlane16_swap_b32 v{A+e}, v{A+e+2}" for e in range(2)]
        L += [f"s_lshl_b32 s{sPP}, s{sW}, 2", f"s_add_u32 s{sPP}, s{sPP}, {XTRA+2048}"] + [f"v_add_f32 v{A+e}, v{A+e}, v{A+e+2}" for e in range(2)]
        L += [f"v_lshl_add_u32 v{T}, v{T}, 4, s{sPP}", f"v_add_u32 v{T+1}, {XTRA+2048}, v{vL16}",
              f"v_add_f32 v{A+2}, v{A}, v{A} row_ror:8 row_mask:0xf bank_mask:0x3", f"v_lshlrev_b32 v{T+10}, 1, v{vL16}", f"v_mov_b32 v{T+9}, s{sTAG}",
              f"v_add_f32 v{A+2}, v{A+1}, v{A+1} row_ror:8 row_mask:0xf bank_mask:0xc"]
        for x in L: s(x); yield
        self.pend_w = s(f"ds_write_b32 v{T}, v{A+2}"); yield
        yield self.after_bar()
        rd = s(f"ds_read_b128 {v(T+4,4)}, v{T+1}"); yield
        yield self.after_slots(3)
        s.wait(lg=rd); yield
        for x in (f"v_add_f32 v{T+4}, v{T+4}, v{T+5}", f"v_add_f32 v{T+6}, v{T+6}, v{T+7}", f"v_mov_b32 v{T+7}, v{T+9}", f"v_add_f32 v{T+4}, v{T+4}, v{T+6}",
                  f"v_cvt_pk_bf16_f32 v{T+5}, v{T+4}, v{T+4}", f"v_lshlrev_b32 v{T+5}, 16, v{T+5}", f"v_sub_f32 v{T+5}, v{T+4}, v{T+5}",
                  f"v_cvt_pk_bf16_f32 v{T+6}, v{T+4}, v{T+5}"): s(x); yield
        s(f"v_mov_b32 v{T+8}, 0"); yield
        s(f"s_bitcmp1_b32 s{sPS}, 4\ns_cselect_b32 s{sPO}, s{sPS}, {OOB}\ns_cselect_b32 s{sPS}, {OOB}, s{sPS}\ns_cselect_b64 vcc, s[{sW0X}:{sW0X+1}], 1\ns_cselect_b64 exec, 1, s[{sW0X}:{sW0X+1}]")
        s(f"buffer_store_dwordx2 {v(T+6,2)}, v{T+10}, {srd(SS)}, s{sPS} offen sc1").lines = 2
        s(f"s_mov_b64 exec, vcc")
        s(f"buffer_store_dwordx4 {v(T+6,4)}, v{T+10}, {srd(SS)}, s{sPO} offen sc1").lines = 2
        if OPT.slowfix:
            s.wait(vm=self.st_cp)
            s("s_mov_b64 exec, 1")
            s(f"buffer_store_dword v{T+7}, off, {srd(SS)}, s{sE2} sc1").lines = 0
        s("s_mov_b64 exec, -1"); yield

    def items_of(self, st):
        if st < 0 or st >= 16: return []
        return [("x", st//2), ("w", st)] if st % 2 == 0 else [("w", st)]

    def dma_items(self):
        items = []
        nv = OPT.nv2[self.typ == "Q"]; vq = list(range(nv))
        for st in range(1, 16):
            items += self.items_of(st)
            if st == OPT.cs_after: items.append(("cs", 0))
            if st == OPT.touch: items.append(("touch", 0))
            if st == OPT.gran_after: items.append(("gran", 0))
            if vq and st >= OPT.v2_from and (st - OPT.v2_from) % OPT.v2_every == 0: items.append(("v2", vq.pop(0)))
        items += [("v2", c) for c in range(19) if c >= nv - len(vq)]
        self.after_cs = items[items.index(("cs", 0)) + 1]
        assert self.after_cs[0] in ("x", "w")
        return items
    def dma_task(self, items):
        s = self.s; typ = self.typ
        for kind, st in items:
            self.cur_item = (kind, st)
            if kind == "gran":
                yield Gate(lambda: self.cs_consumed)
                for t in self.gran_loads:
                    self.ld_gran = s(t); self.ld_gran.lines = 8; yield "d"
                self.gran_issued = True; self.log.append(f"gran@{self.slotno}")
                continue
            if kind == "cs":
                lab = s.newlabel("L_cs")
                s(f"s_cmp_ge_u32 s{sCL}, {OOB}\ns_cbranch_scc1 {lab}")
                for n in range(6):
                    s(f"buffer_load_dwordx4 {v(CS+4*n,4)}, v{vCV}, {srd(SC)}, s{sCL} offen").lines = OPT.cs_lines
                    if n < 5: s(f"s_add_u32 s{sCL}, s{sCL}, s{sPP}")
                s.nvm -= 6
                s.label(lab)
                s(f"s_add_u32 s{SC}, s{SS}, {W2C}\ns_addc_u32 s{SC+1}, s{SS+1}, 0\ns_cmp_eq_u32 s{sO16}, 0\ns_mov_b32 s{SC+2}, 524288\ns_cselect_b32 s{SC+2}, 1835008, s{SC+2}")
                s(f"s_cmp_eq_u32 s{sR4}, 0\ns_cselect_b64 s[{SC}:{SC+1}], s[{sTP}:{sTP+1}], s[{SC}:{SC+1}]\ns_cselect_b32 s{SC+2}, s{SC+2}, 294912")
                yield "d"
                continue
            if kind == "touch":
                s(f"global_load_dword v{MF+4}, v{MF}, s[{sTP}:{sTP+1}]").lines = 18; yield "d"
                continue
            if kind == "w" and st == 8 and OPT.rot1:
                s(f"s_mul_i32 s{sDT}, s{sROT}, {512*3584}"); yield "c"
                for r in ((sO1, sO4) if typ == "H" else (sO1, sO2)): s(f"s_sub_u32 s{r}, s{r}, s{sDT}"); yield "c"
                s(f"s_mul_i32 s{sDT}, s{sROT}, {512*3072}"); yield "c"
                for r in ((sO2, sO3) if typ == "H" else (sO3,)): s(f"s_sub_u32 s{r}, s{r}, s{sDT}"); yield "c"
            if (kind, st) == ("x", 4) and OPT.rot1:
                s(f"s_lshl_b32 s{sDT}, s{sROT}, 10"); yield "c"
                s(f"s_sub_u32 s{sOX}, s{sOX}, s{sDT}"); yield "c"
            if kind == "v2":
                if st == 0 and OPT.slowfix: yield Gate(lambda: self.cp_ok)
                if st == 9 and OPT.rot2: s(f"s_sub_u32 s{sOW2}, s{sOW2}, s{sWR}"); yield "c"
                if st == 16: s(f"s_or_b32 s{sOW2}, s{sOW2}, s{sO16}"); yield "c"
                if st == 18: s(f"s_or_b32 s{sOW2}, s{sOW2}, s{sO18}"); yield "c"
            fl = {"x": self.freex, "w": self.freew, "v2": self.free}[kind]
            want = {"x": XS[st % 3], "w": WS[st % 4]}.get(kind)
            yield Gate(lambda: (want in fl) if want is not None else len(fl) > 0)
            base = fl[0] if want is None else want
            fl.remove(base)
            self.slot_of[(kind, st)] = base
            self.log.append(f"{kind}{st}:{self.slotno:.0f}")
            if kind == "w":
                yield from self.w_item(typ, base)
                last = self.wlast
            elif kind == "x":
                s(f"s_add_u32 m0, s{sMW}, {base}")
                for n in range(4):
                    last = s(f"buffer_load_dwordx4 v{VX+n}, {srd(SX)}, s{sOX} offen offset:{n*1024} lds"); yield "d"
                s(f"s_add_u32 s{sOX}, s{sOX}, 128"); yield "c"
            elif not self.in_tail:
                s(f"s_lshr_b32 s{sBT}, s{sC2}, 2")
                for n in range(4):
                    s(f"s_add_u32 m0, s{sMW}, {base + n*1024}")
                    if n: s(f"s_add_u32 s{sOW2}, s{sOW2}, s{sBT}")
                    last = s(f"buffer_load_dwordx4 v{vDW}, {srd(SC)}, s{sOW2} offen sc1 lds"); yield "d"
                s(f"s_add_u32 s{sOW2}, s{sOW2}, s{sBT}"); yield "c"
            else:
                if not self.vy_ready:
                    self.vy_ready = True
                    s(f"v_mov_b32 v{VX}, v{vDW}")
                    for n in (1, 2, 3): s(f"v_add_u32 v{VX+n}, s{sH36}, v{VX+n-1}")
                s(f"s_add_u32 m0, s{sMW}, {base}")
                for n in range(4):
                    last = s(f"buffer_load_dwordx4 v{VX+n}, {srd(SC)}, s{sOW2} offen offset:{n*1024} sc1 lds"); yield "d"
                s(f"s_add_u32 s{sOW2}, s{sOW2}, s{sC2}"); yield "c"
            self.last_of[(kind, st)] = last

    def dma_step(self, force_item=None, max_d=None):
        u0 = self.s.units
        while self.dma is not None:
            if force_item is not None:
                if force_item in self.last_of: break
            elif max_d is not None and max_d <= 0: break
            if self.dma_gate is not None:
                if not self.dma_gate.fn():
                    assert force_item is None, f"DMA blocked while forcing {force_item} at {self.slotno}"
                    break
                self.dma_gate = None
            try: r = next(self.dma)
            except StopIteration: self.dma = None; break
            if isinstance(r, Gate): self.dma_gate = r; continue
            if r == "d" and max_d is not None: max_d -= 1
        return self.s.units - u0

    def run_tasks(self, budget):
        s = self.s
        while budget > 0:
            progressed = False
            for t in list(self.tasks):
                if t["gate"] is not None:
                    if not t["gate"].fn(): continue
                    t["gate"] = None
                c0 = s.units; n0 = s.count
                try: r = next(t["gen"])
                except StopIteration:
                    self.tasks.remove(t); progressed = True
                    self.log.append(f"{t['gen'].__name__}@{self.slotno:.0f}"); break
                progressed = True
                if isinstance(r, Gate): t["gate"] = r
                if s.count > n0 and s.hist[-1].kind == "mfma": self.slotno += 1; return budget, True
                budget -= s.units - c0
                break
            if not progressed: break
        return budget, False
    def add_task(self, gen): self.tasks.append({"gen": gen, "gate": None})
    def after_slots(self, n):
        t = self.slotno + n
        return Gate(lambda: self.slotno >= t)
    def after_bar(self):
        t = self.nbar + 1
        return Gate(lambda: self.nbar >= t)
    def slack(self):
        k, st = self.cur_item
        if k == "v2": return 999 if self.in_tail or ("w", 15) in self.last_of else OPT.lead
        if k in ("touch", "cs"): return OPT.lead
        if k == "gran": return OPT.prep_at - self.mainslot
        if k == "x": st = 2*st
        return 20*(st-1) + 10 - self.mainslot
    def ta_update(self):
        s = self.s
        for ins in s.vmlog[self.ta_seen:]:
            lines = 8
            if "x2" in ins.mn: lines = 7 if "load" in ins.mn else 1
            lines = getattr(ins, "lines", lines)
            self.ta = max(self.ta, self.slotno + min(0, OPT.ta_init + self.slotno)) + lines*OPT.ta_line
            st_ = "store" in ins.mn
            if st_ and lines >= 5: self.ta += OPT.st_extra
            ins.land = self.ta + (OPT.lat_st if st_ else OPT.lat)
        self.ta_seen = len(s.vmlog)
    def fill(self, u0):
        s = self.s
        while True:
            b = OPT.budget - (s.units - u0) - self.debt
            self.ta_update()
            free = self.ta - self.slotno <= OPT.ta_ahead
            if b > 0 and (free or self.slack() <= OPT.crit): b -= self.dma_step(max_d=1)
            b, mf = self.run_tasks(b)
            self.debt = max(0, -b) if not mf else 0
            if not mf: break
            u0 = s.units

    def prep_task(self):
        s = self.s; typ = self.typ
        yield Gate(lambda: self.gran_issued and self.mainslot >= OPT.prep_at)
        s.wait(vm=self.ld_gran); yield
        pairs = [(ST+1, f"s{sTAG}")]
        for u in range(5): pairs += [(CS+4*u+1, f"s{sTAG}"), (CS+4*u+3, f"s{sTAG}")]
        yield from self.check(pairs, self.gran_loads, typ + "g")
        s(f"v_mov_b32 v{ST+2}, v{ST}"); yield
        s(f"s_mov_b32 s{sT2}, 0x01000100"); yield
        s(f"v_permlane32_swap_b32 v{ST}, v{ST+2}"); yield
        for t in range(2):
            g = ST+2*t
            for x in (f"v_and_b32 v{vD+t}, 0xffff0000, v{g}", f"v_xor_b32 v{g}, 0x8000, v{g}", f"v_rcp_f32 v{vC+t}, v{vD+t}",
                      f"v_perm_b32 v{MF+4*t}, v{g}, v{g}, s{sT2}", f"v_mov_b32 v{MF+4*t+1}, 0", f"v_mov_b32 v{MF+4*t+2}, v{MF+4*t}", f"v_mov_b32 v{MF+4*t+3}, 0",
                      f"v_mul_f32 v{vC+t}, {hex(LOG2E)}, v{vC+t}"): s(x); yield
        self.prep_done = True
        for u in range(5):
            for t in range(2):
                ac = v(acc(u, t), 16); A_, B_ = v(CS+4*u, 4), v(MF+4*t, 4)
                if typ == "H" and u < 2: A_, B_ = B_, A_
                s(f"{MF32} {ac}, {A_}, {B_}, {ac}"); yield
                yield self.after_slots(1)
        self.corr_done = True

    def glu_ep(self, R, t, soff, imm):
        s = self.s; G, U = R, R+8
        for i in range(8): s(f"v_mul_f32 v{G+i}, v{vC+t}, v{G+i}"); yield
        for i in range(8): s(f"v_exp_f32 v{G+i}, -v{G+i}"); yield
        for i in range(8): s(f"v_fma_f32 v{G+i}, v{G+i}, v{vD+t}, v{vD+t}"); yield
        for i in range(8): s(f"v_rcp_f32 v{G+i}, v{G+i}"); yield
        for i in range(8): s(f"v_mul_f32 v{U+i}, v{U+i}, v{G+i}"); yield
        for i in range(4): s(f"v_cvt_pk_bf16_f32 v{G+i}, v{U+2*i}, v{U+2*i+1}"); yield
        self.last_store = s(f"buffer_store_dwordx4 {v(G,4)}, v{vL16}, {srd(SH)}, s{soff} offen offset:{imm} sc1"); yield
    def glu_units(self, units, L, so):
        s = self.s
        for x in L + [f"s_lshl_b32 s{so}, s{so}, 11", f"s_add_u32 s{so}, s{so}, s{sOH}"]: s(x); yield
        for k, u in enumerate(units):
            for t in range(2): yield from self.glu_ep(acc(u, t), t, so, k*2048+t*1024)
    def glu_all(self):
        so = sPS
        grp = lambda add: [f"s_mul_i32 s{so}, s{sJ}, 6", f"s_add_u32 s{so}, s{so}, s{sCH}", f"s_lshl_b32 s{so}, s{so}, 1"] + ([f"s_add_u32 s{so}, s{so}, {add}"] if add else [])
        if self.typ == "H":
            yield from self.glu_units([2, 3], grp(8), so)
            yield from self.glu_units([4], [f"s_lshl_b32 s{so}, s{sJ}, 1", f"s_add_u32 s{so}, s{so}, s{sCH}", f"s_add_u32 s{so}, s{so}, 96"], so)
        else:
            yield from self.glu_units([0, 1], grp(0), so)
            yield from self.glu_units([2, 3], grp(4), so)
    def flag(self, off, base, delay):
        s = self.s; st = self.last_store
        yield Gate(lambda: getattr(st, "land", 1e9) <= self.slotno + 1)
        s(f"v_mov_b32 v{ST}, s{sTAG}"); yield
        s(f"v_mov_b32 v{ST+1}, s{sEP}"); yield
        if base: s(f"s_add_u32 s{sT3}, s{off}, {base}")
        s.wait(vm=st)
        s("s_mov_b64 exec, 1")
        s(f"buffer_store_dwordx2 {v(ST,2)}, off, {srd(SS)}, s{sT3 if base else off} sc1")
        s("s_mov_b64 exec, -1"); yield
    def phi(self, R, n, creg, tmp):
        s = self.s
        eps = hex(f2u(1e-6*1.4426950408889634))
        for b in range(0, n, 4):
            for i in range(4): s(f"v_mul_f32 v{R+b+i}, v{creg(b+i)}, v{R+b+i}"); yield
            for i in range(4): s(f"v_exp_f32 v{tmp+i}, v{R+b+i} clamp"); yield
            for i in range(4): s(f"v_max_f32 v{R+b+i}, {eps}, v{R+b+i}"); yield
            for i in range(4): s(f"v_fmac_f32 v{tmp+i}, {hex(LN2)}, v{R+b+i}"); yield
            for i in range(2): s(f"v_cvt_pk_bf16_f32 v{R+b//2+i}, v{tmp+2*i}, v{tmp+2*i+1}"); yield

    def kv_task(self):
        s = self.s; T = TMP
        yield Gate(lambda: self.prep_done and (self.cp_ok or not OPT.slowfix))
        ad, ad2 = ST+2, ST+3
        for x in (f"s_add_u32 s{sT1}, s{sMW}, {XTRA}", f"v_and_b32 v{ad}, 31, v{vL}", f"v_lshl_add_u32 v{ad}, v{ad}, 2, s{sT1}",
                  f"v_lshrrev_b32 v{ad2}, 5, v{vL}", f"v_lshl_add_u32 v{ad2}, v{ad2}, 4, s{sT1}"): s(x); yield
        s(f"ds_write_b32 v{ad}, v{vC}"); yield
        s(f"ds_write_b32 v{ad}, v{vC+1} offset:128"); yield
        for t in range(2):
            for i in range(4): rd = s(f"ds_read_b128 {v(T+16*t+4*i,4)}, v{ad2} offset:{128*t+32*i}"); yield
        for x in (f"v_add_u32 v{ad}, s{sT1}, v{vL16}", f"v_xor_b32 v{ad2}, 0x2000, v{ad}"): s(x); yield
        yield Gate(lambda: self.in_tail)
        s.wait(lg=rd); yield
        tmp = CS
        for t in range(2):
            yield from self.phi(acc(0, t), 16, lambda i: T+16*t+i, tmp)
            Vr = acc(1, t)
            for i in range(16): s(f"v_mul_f32 v{Vr+i}, v{T+16*t+i}, v{Vr+i}"); yield
            for i in range(8): s(f"v_cvt_pk_bf16_f32 v{Vr+i}, v{Vr+2*i}, v{Vr+2*i+1}"); yield
        D1, D2 = T, T+16
        first = True
        for t in range(2):
            for kk in range(2):
                pk = v(acc(0, t)+4*kk, 4); vv = v(acc(1, t)+4*kk, 4)
                s(f"{MF32} {v(D1,16)}, {pk}, {vv}, {'0' if first else v(D1,16)}"); yield
                s(f"{MF32} {v(D2,16)}, {pk}, {v(KF,4)}, {'0' if first else v(D2,16)}"); yield
                first = False
        self.kv_mf = True
        yield self.after_slots(2)
        mk = f"s[{sMK}:{sMK+1}]"
        for i in range(8): s(f"v_cndmask_b32 v{D1+i}, v{D1+i}, v{D2+i}, {mk}"); yield
        for i in range(8, 16): s(f"v_cndmask_b32 v{D1+i}, v{D2+i}, v{D1+i}, {mk}"); yield
        for i in range(4): w = s(f"ds_write_b128 v{ad}, {v(D1+4*i,4)} offset:{1024*i}"); yield
        yield self.after_slots(2)
        s.wait(lg=w)
        s("s_barrier"); yield
        for i in range(4): rd = s(f"ds_read_b128 {v(D2+4*i,4)}, v{ad2} offset:{1024*i}"); yield
        yield self.after_slots(3)
        s.wait(lg=rd); yield
        for i in range(16): s(f"v_add_f32 v{D1+i}, v{D1+i}, v{D2+i}"); yield
        for i in range(8): s(f"v_cvt_pk_bf16_f32 v{D2+i}, v{D1+2*i}, v{D1+2*i+1}"); yield
        for x in self.kvaddr(ad, ad2, True): s(x); yield
        s(f"s_cmp_eq_u32 s{sTG}, 0\ns_cselect_b64 vcc, 0, -1")
        for i in range(4): s(f"v_cndmask_b32 v{D2+i}, v{D2+i}, v{D2+4+i}, vcc")
        yield
        self.last_store = s(f"buffer_store_dwordx4 {v(D2,4)}, v{ad}, {srd(SS)}, s{sKV} offen sc1"); self.last_store.lines = 5; yield
        self.kv_stored = True
        yield from self.flag(sKF, 0, OPT.flag_delay)

    def kvaddr(self, ad, t, store):
        o = [f"v_and_b32 v{ad}, 15, v{vL}", f"v_lshrrev_b32 v{t}, 5, v{vL}", f"v_lshl_add_u32 v{ad}, v{t}, 4, v{ad}", f"v_lshlrev_b32 v{ad}, 4, v{ad}", f"v_lshlrev_b32 v{t}, 4, v{t}", f"v_add_u32 v{t}, 512, v{t}"]
        if store: o += [f"v_and_b32 v{vBT}, 15, v{vL}", f"v_lshl_add_u32 v{t}, v{vBT}, 26, v{t}"]
        o += [f"v_bfe_u32 v{vBT}, v{vL}, 4, 1", f"v_cmp_eq_u32 vcc, s{sTG}, v{vBT}\nv_cndmask_b32 v{ad}, v{t}, v{ad}, vcc"]
        return o
    def kvreg(self, r): return acc(0, 0) + 4*r
    def q_phi(self):
        for t in range(2): yield from self.phi(acc(4, t), 16, lambda i, t=t: vC+t, CS+16)
        self.phi_done = True
    def q_task(self):
        s = self.s
        ad, ad2 = XA, XA+1
        SUM, KA = CS, MF
        for x in (f"v_and_b32 v{ad}, 15, v{vL}", f"v_lshlrev_b32 v{ad}, 3, v{ad}"): s(x); yield
        yield Gate(lambda: self.slotno >= self.tail_t0 + OPT.kv_poll_at and self.tail_done)
        txt = f"buffer_load_dwordx2 {v(ST+2,2)}, v{ad}, {srd(SS)}, s{sKF} offen sc1"
        ld = s(txt); yield
        yield Gate(lambda: getattr(ld, "land", 1e9) + 4 <= self.slotno)
        s.wait(vm=ld); yield
        yield from self.check([(ST+2, f"s{sTAG}"), (ST+3, f"s{sEP}")], [txt], "kvf")
        for x in self.kvaddr(ad, ad2, False): s(x); yield
        kl = []; self.hold_dma = True
        for r in range(16):
            yield Gate(lambda: self.ta - self.slotno <= OPT.ta_ahead + OPT.kv_ahead)
            if r and r % 4 == 0: s(f"s_add_u32 s{sKV}, s{sKV}, {4*KVS}")
            kl.append(s(f"buffer_load_dwordx4 {v(self.kvreg(r),4)}, v{ad}, {srd(SS)}, s{sKV} offen offset:{(r%4)*KVS} sc1")); kl[-1].lines = 5; yield
        self.hold_dma = False
        for x in (f"s_add_u32 s{sE1}, s{sMW}, {XTRA}", f"v_add_u32 v{ad}, s{sE1}, v{vL16}", f"s_lshl_b32 s{sE1}, s{sCH}, 12", f"s_add_u32 s{sE1}, s{sE1}, {XTRA}", f"v_add_u32 v{ad2}, s{sE1}, v{vL16}",
                  f"s_lshl_b32 s{sE1}, s{sJ}, 1", f"s_add_u32 s{sE1}, s{sE1}, s{sCH}", f"s_lshl_b32 s{sE1}, s{sE1}, 12", f"s_add_u32 s{sE1}, s{sE1}, {112*2048}", f"s_add_u32 s{sE1}, s{sE1}, s{sOH}",
                  f"v_mov_b32 v{ST+2}, s{sEP}"): s(x); yield
        for r in range(16):
            if r % 4 == 0:
                yield Gate(lambda: getattr(kl[r+3], "land", 1e9) <= self.slotno)
                s.wait(vm=kl[r+3])
            s(f"{MF32} {v(SUM,16)}, {v(KF,4)}, {v(self.kvreg(r),4)}, {'0' if r == 0 else v(SUM,16)}"); yield
        yield self.after_slots(2)
        for i in range(4): s(f"v_cvt_pk_bf16_f32 v{SUM+i}, v{SUM+2*i}, v{SUM+2*i+1}"); yield
        w = s(f"ds_write_b128 v{ad}, {v(SUM,4)}"); yield
        yield self.after_slots(2)
        s.wait(lg=w)
        s("s_barrier"); yield
        s(f"ds_read_b128 {v(KA,4)}, v{ad2}"); yield
        rd = s(f"ds_read_b128 {v(KA+4,4)}, v{ad2} offset:8192"); yield
        s("s_mov_b64 exec, 1")
        i_ = s(f"buffer_store_dword v{ST+2}, off, {srd(SS)}, s{sEO} sc1"); i_.lines = 0
        s("s_mov_b64 exec, -1"); yield
        yield self.after_slots(2)
        yield Gate(lambda: self.phi_done)
        s.wait(lg=rd)
        Ds = [acc(0, 0), acc(0, 1), acc(1, 0), acc(1, 1)]
        for t in range(2):
            for hd in range(2):
                s(f"{MF32} {v(Ds[2*t+hd],16)}, {v(KA+4*hd,4)}, {v(acc(4, t)+4*hd,4)}, 0"); yield
        for t in range(2):
            for hd in range(2):
                D = Ds[2*t+hd]; num, den = (D, D+8) if hd == 0 else (D+8, D)
                s(f"v_add_f32 v{den}, {hex(f2u(1e-6))}, v{den}"); yield
                s(f"v_rcp_f32 v{den}, v{den}"); yield
                s(f"v_mul_f32 v{num}, {hex(LN2)}, v{num}"); yield
                s(f"v_mul_f32 v{den+1}, {hex(LN2)}, v{den}"); yield
                s(f"v_mul_f32 v{num}, v{den}, v{num}"); yield
                for i in range(1, 8): s(f"v_mul_f32 v{num+i}, v{den+1}, v{num+i}"); yield
                for i in range(4): s(f"v_cvt_pk_bf16_f32 v{den+4+i}, v{num+2*i}, v{num+2*i+1}"); yield
                self.last_store = s(f"buffer_store_dwordx4 {v(den+4,4)}, v{vL16}, {srd(SH)}, s{sE1} offen offset:{hd*2048+t*1024} sc1"); yield
        self.q_done = True
        yield from self.flag(sOF, FLAGA, OPT.flag_delay)
        self.flagA_done = True

    def unit_rd(self, u):
        if self.typ == "H": return [(WA+2, 8192, 2048, 512), (WA+2, 12288, 2048, 512), (WA, 0, 2048, 512), (WA+1, 0, 2048, 512), (WA+3, 16384, 1024, 256)][u]
        return [(WA, 0, 2048, 512), (WA+1, 0, 2048, 512), (WA, 8192, 2048, 512), (WA+1, 8192, 2048, 512), (WA+2, 16384, 2048, 512)][u]
    def reads_for(self, G):
        ks, h = G//2, G % 2
        b = WF + 12*(G % 3); o = []
        for k, u in enumerate((0, 1) if h == 0 else (2, 3, 4)):
            r, off, ss, e = self.unit_rd(u)
            if h == 0: o.append(f"ds_read_b128 {a(XF+8*(ks%3)+4*k,4)}, v{XA+ks%4}" + (" offset:4096" if k else ""))
            o += [f"ds_read_b64_tr_b16 {a(b+4*k,2)}, v{r} offset:{off+(ks%2)*ss}", f"ds_read_b64_tr_b16 {a(b+4*k+2,2)}, v{r} offset:{off+(ks%2)*ss+e}"]
        return o
    def mfmas_for(self, G):
        ks, h = G//2, G % 2
        b = WF + 12*(G % 3); o = []
        for k, u in enumerate((0, 1) if h == 0 else (2, 3, 4)):
            for t in range(2):
                ac = v(acc(u, t), 16); W_, X_ = a(b+4*k, 4), a(XF+8*(ks % 3)+4*t, 4)
                if self.typ == "H" and u < 2: W_, X_ = X_, W_
                o.append(f"{MF32} {ac}, {W_}, {X_}, {'0' if ks == 0 else ac}")
        return o
    def barrier(self, n):
        s = self.s
        its = self.items_of(n)
        for it in its: self.dma_step(force_item=it)
        vm = max((self.last_of[it] for it in its), key=lambda i: i.vmseq) if its else None
        lg = self.pend_w; self.pend_w = None
        if vm is not None or lg is not None: s.wait(vm=vm, lg=lg)
        s("s_barrier"); self.nbar += 1
        if n >= 2 and n <= 16: self.freew.append(self.slot_of[("w", n-2)])
        if n >= 2 and n % 2 == 0: self.freex.append(self.slot_of[("x", n//2-1)])
    def addr_update(self, txt, Gr):
        s = self.s
        ks = Gr//2; st = Gr//4
        if "b128" in txt:
            m = ks//4
            if "offset:4096" in txt and m < 7:
                d = (XS[(m+1) % 3] - XS[m % 3]) & 0xffffffff
                s(f"v_add_u32 v{XA+ks%4}, {hex(d)}, v{XA+ks%4}")
        elif st < 15:
            later = [x for g in range(Gr, 4*st+4) for x in self.reads_for(g)]
            later = later[later.index(txt)+1:]
            r = txt.split(",")[1].split()[0]
            if not any(f", {r} " in x for x in later):
                d = (WS[(st+1) % 4] - WS[st % 4]) & 0xffffffff
                s(f"v_add_u32 {r}, {hex(d)}, {r}")

    def phase1(self, typ):
        s = self.s
        self.typ = typ; self.ntr = 0
        self.tasks = []; self.free = [8*SLOT]; self.freex = XS[1:]; self.freew = WS[1:]
        self.slot_of = {("x", 0): XS[0], ("w", 0): WS[0]}; self.last_of = {("x", 0): self.x0last, ("w", 0): self.w0last}
        self.dma = self.dma_task(self.dma_items()); self.dma_gate = None
        self.slotno = 0; self.mainslot = 0; self.nbar = 0; self.pend_w = None; self.debt = 0; self.cur_item = ("w", 1)
        self.cs_consumed = self.gran_issued = self.prep_done = self.phi_done = self.q_done = self.cp_ok = self.hold_dma = False
        self.kv_mf = self.corr_done = self.in_tail = self.vy_ready = self.kv_stored = self.tail_done = self.flagB_done = False
        self.flagA_done = (typ == "H"); self.tail_t0 = 1e9; self.loads = {}
        self.type_setup(typ)
        self.dma_step(force_item=("w", 1))
        self.stats_compute()
        self.barrier(0)
        self.stamp(3); self.tr()
        rdl = {}
        for G in (0, 1):
            for x in self.reads_for(G): rdl[G] = s(x); self.addr_update(x, G)
        for it in [("x", 1), ("w", 2)][:OPT.pre_items]: self.dma_step(force_item=it)
        def cps():
            yield self.after_slots(OPT.cp_delay)
            self.cp_store(); yield
        self.ta_seen = len(s.vmlog); self.ta = OPT.ta_init
        self.add_task(cps())
        self.add_task(self.colsum_task())
        if OPT.slowfix: self.add_task(self.cp_poll())
        self.mv = {"gen": self.move_task(), "gate": None}; self.tasks.append(self.mv)
        self.add_task(self.prep_task())
        if typ == "H": self.add_task(self.kv_task())
        for G in range(64):
            if G == 32: self.stamp(4)
            s.wait(lg=rdl[G])
            nxt = self.reads_for(G+2) if G+2 < 64 else []
            mf = self.mfmas_for(G); n = len(mf)
            for i, m in enumerate(mf):
                s(m); self.slotno += 1; self.mainslot += 1
                u0 = s.units - (OPT.c_s if i == n-1 else 0)
                if i == 0: self.tr()
                if G % 4 == 2 and i == 0 and G < 62: self.barrier(G//4+1)
                if G == 63 and i == 0: self.barrier(17)
                lo, hi = (i*len(nxt)+n-1)//n, ((i+1)*len(nxt)+n-1)//n
                for x in nxt[lo:hi]: rdl[G+2] = s(x); self.addr_update(x, G+2)
                self.fill(u0)
        assert self.corr_done, "corrections late"
        self.stamp(5); self.tr()
        self.log.append(f"|end@{self.slotno}|")

    def move_task(self):
        s = self.s
        base = 8*SLOT; prev = None
        for c in range(19):
            yield Gate(lambda: ("v2", c) in self.last_of and getattr(self.last_of[("v2", c)], "land", 1e9) <= self.slotno)
            if c >= 12: yield Gate(lambda: self.in_tail)
            if c >= 16: yield Gate(lambda: self.tail_done and (self.q_done if self.typ == "Q" else self.kv_stored))
            slot = self.slot_of[("v2", c)]
            d = (slot - base) & 0xffffffff; base = slot
            if d:
                for r in range(2): s(f"v_add_u32 v{W2A+r}, {hex(d)}, v{W2A+r}"); yield
            s.wait(vm=self.last_of[("v2", c)]); yield
            for sb in range(2):
                for c2 in range(2):
                    f, r = w2reg(2*c+sb, c2)
                    for hf in range(2):
                        rd = s(f"ds_read_b64_tr_b16 {f}[{r+2*hf}:{r+2*hf+1}], v{W2A+c2} offset:{sb*2048+hf*1024}"); yield
            if prev is not None:
                s.wait(lg=prev[1]); self.free.append(prev[0]); prev = None; yield
            if not self.in_tail:
                yield self.after_slots(3)
                s.wait(lg=rd); self.free.append(slot); yield
            else: prev = (slot, rd)
    def tail_ep(self):
        if self.typ == "H": yield Gate(lambda: self.kv_mf)
        yield from self.glu_all()
        self.tail_done = True
        yield from self.flag(sOF, FLAGB, OPT.tail_flag_delay)
        self.flagB_done = True
        self.stamp(6)
    def poll_task(self):
        s = self.s
        yield Gate(lambda: self.tail_done and ("v2", OPT.poll_chunk) in self.last_of)
        for x in (f"s_cmp_eq_u32 s{sW}, 0", f"s_cselect_b32 s{sT2}, 15, 31", f"v_and_b32 v{XA+2}, s{sT2}, v{vL}", f"v_lshlrev_b32 v{XA+2}, 3, v{XA+2}"): s(x)
        yield Gate(lambda: self.flagB_done and self.flagA_done)
        txt = f"buffer_load_dwordx2 {v(WA,2)}, v{XA+2}, {srd(SS)}, s{sFA} offen sc1"
        pl = s(txt); yield
        yield Gate(lambda: self.dma is None and getattr(pl, "land", 1e9) <= self.slotno)
        self.stamp(7); self.tr()
        s.wait(vm=pl)
        for _ in self.check([(WA, f"s{sTAG}"), (WA+1, f"s{sEP}")], [txt], "pa" + self.typ): pass
        self.stamp(8); self.tr()
        self.nvm_h0 = s.nvm
        for n in range(NB-1):
            for _ in self.hissue(n): yield
    def tail(self):
        s = self.s
        self.in_tail = True; self.tail_t0 = self.slotno
        self.free += [i*SLOT for i in range(8)]
        mk = lambda g: {"gen": g, "gate": None}
        left = [t for t in self.tasks if t is not self.mv]
        if self.typ == "H": pri = left + [mk(self.tail_ep())]; mid = []
        else: pri = left + [mk(self.tail_ep()), mk(self.q_phi())]; mid = [mk(self.q_task())]
        low = [self.mv, mk(self.poll_task())]
        t0 = self.slotno; u0 = s.units; self.extra = 0.0
        def now(): return t0 + (s.units - u0)/8.0 + self.extra
        def sync(): self.slotno = now(); self.ta_update()
        def step(tl, n):
            self.tasks = list(tl); c0 = s.count
            while s.count - c0 < n and self.tasks:
                c1 = s.count
                self.run_tasks(0.1)
                if s.count > c1 and s.hist[-1].kind == "mfma": self.extra += 0.85
                sync()
                if s.count == c1 and all(t["gate"] is not None and not t["gate"].fn() for t in self.tasks): break
            return self.tasks
        idle = 0; ta_save = OPT.ta_line; OPT.ta_line = OPT.tail_ta
        while pri or mid or low or self.dma is not None:
            c0 = s.count
            sync()
            if self.ta - self.slotno <= OPT.tail_ahead and not self.hold_dma: self.dma_step(max_d=1); sync()
            low = step(low, OPT.tail_low)
            mid = step(mid, OPT.tail_mid if pri else 6)
            pri = step(pri, OPT.tail_pri)
            if s.count == c0:
                self.extra += 0.5; idle += 1
                assert idle < 2000, "tail deadlock"
        OPT.ta_line = ta_save
        self.log.append(f"|tailend@{now():.0f} idle {idle/2}|")
        assert s.nvm - self.nvm_h0 == 2*(NB-1)
        s.wait(lg=0)

    def hissue(self, n):
        s = self.s
        if n >= 38: return
        so, imm = sHA, (n % 2)*2048
        if n == 18 and OPT.rot2: s(f"s_sub_u32 s{so}, s{so}, s{sHR}")
        if n == 32: s(f"s_or_b32 s{so}, s{so}, s{sO16}")
        if n == 36: s(f"s_or_b32 s{so}, s{so}, s{sO18}")
        s(f"buffer_load_dwordx4 {v(hb(n),4)}, v{vL16}, {srd(SH)}, s{so} offen offset:{imm} sc1"); yield
        self.loads[n] = s(f"buffer_load_dwordx4 {v(hb(n)+4,4)}, v{vL16}, {srd(SH)}, s{so} offen offset:{imm+1024} sc1")
        if n % 2 == 1: s(f"s_add_u32 s{so}, s{so}, 4096")
        yield
    def phase2(self):
        s = self.s
        ACC = ACC2; loads = self.loads; XR = TMP; T = vBT; RW, RR, vSV = VX, XA, WV
        setup = [f"v_lshrrev_b32 v{T}, 3, v{vL}", f"v_and_b32 v{vSV}, 7, v{vL}", f"v_lshlrev_b32 v{vSV}, 4, v{vSV}", f"v_lshl_add_u32 v{vSV}, v{T}, 10, v{vSV}",
                 f"s_lshl_b32 s{sT1}, s{sTB}, 2", f"s_add_u32 s{sT1}, s{sT1}, s{sW}", f"s_lshl_b32 s{sT1}, s{sT1}, 14", f"s_lshl_b32 s{sT2}, s{sCT}, 7", f"s_add_u32 s{sT1}, s{sT1}, s{sT2}", f"s_add_u32 s{sT2}, s{sT1}, 8192",
                 f"buffer_load_dwordx4 {v(XR,4)}, v{vSV}, {srd(SX)}, s{sT1} offen", f"buffer_load_dwordx4 {v(XR+4,4)}, v{vSV}, {srd(SX)}, s{sT2} offen",
                 f"v_and_b32 v{RW}, 15, v{vL}", f"v_lshlrev_b32 v{RW}, 8, v{RW}", f"v_bfe_u32 v{T}, v{vL}, 4, 1", f"v_lshl_add_u32 v{RW}, v{T}, 14, v{RW}",
                 f"v_lshrrev_b32 v{T}, 5, v{vL}", f"v_xor_b32 v{T}, v{T}, v{vL}", f"v_and_b32 v{T}, 7, v{T}", f"v_lshl_add_u32 v{RW}, v{T}, 4, v{RW}", f"v_add_u32 v{RW}, s{sMW}, v{RW}"]
        setup += [f"v_xor_b32 v{RW+i}, {32*i}, v{RW}" for i in (1, 2, 3)]
        setup += [f"v_lshrrev_b32 v{T}, 3, v{vL}", f"v_lshlrev_b32 v{RR}, 8, v{T}", f"v_and_b32 v{RR+1}, 7, v{vL}", f"v_lshlrev_b32 v{RR+1}, 1, v{RR+1}", f"v_xor_b32 v{T}, v{T}, v{RR+1}",
                  f"v_lshl_add_u32 v{RR}, v{T}, 4, v{RR}", f"s_lshl_b32 s{sT3}, s{sW}, 14", f"v_add_u32 v{RR}, s{sT3}, v{RR}", f"v_xor_b32 v{RR+1}, 16, v{RR}",
                  f"s_mov_b32 s{sT3}, {hex(LOG2E | 0x80000000)}"]
        for n in range(38):
            if n == 32: s(f"s_cmp_eq_u32 s{sW}, 0\ns_cbranch_scc1 L_red")
            s.wait(vm=loads[n])
            ig = self.hissue(n+NB-1)
            for c2 in range(2):
                for t in range(2):
                    ac = v(ACC+32*c2+16*t, 16)
                    f_, r_ = w2reg(n, c2); W_ = f"{f_}[{r_}:{r_+3}]"
                    s(f"{MF32} {ac}, {W_}, {v(hb(n)+4*t,4)}, {'0' if n == 0 else ac}")
                    if c2 == 0: next(ig, None)
                    elif n >= 1:
                        for _ in range(3):
                            if setup: s(setup.pop(0))
                    if c2 == 1 and t == 1 and n % 2 == 1: self.tr()
        s.label("L_red")
        self.stamp(9)
        for c2 in range(2):
            for t in range(2):
                for i in range(4):
                    w = s(f"ds_write_b128 v{RW+i}, {v(ACC+32*c2+16*t+4*i,4)} offset:{t*32768+c2*128}")
        s.wait(lg=w)
        s("s_barrier")
        P = HB; rds = {}
        for n in range(2):
            for wp in (1, 2, 3, 0):
                for h in range(2): rds[(n, wp)] = s(f"ds_read_b128 {v(P+32*n+8*wp+4*h,4)}, v{RR+h} offset:{wp*4096+n*2048}")
        s("s_waitcnt vmcnt(0)")
        for n in range(2):
            B = P+32*n
            s.wait(lg=rds[(n, 3)])
            for i in range(0, 8, 2): s(f"v_pk_add_f32 {v(B+8+i,2)}, {v(B+8+i,2)}, {v(B+16+i,2)}")
            for i in range(0, 8, 2): s(f"v_pk_add_f32 {v(B+8+i,2)}, {v(B+8+i,2)}, {v(B+24+i,2)}")
            for i in range(8): s(f"v_mul_f32 v{B+16+i}, s{sT3}, v{B+8+i}")
            for i in range(8): s(f"v_exp_f32 v{B+16+i}, v{B+16+i}")
            s.wait(lg=rds[(n, 0)])
            for i in range(0, 8, 2): s(f"v_pk_mul_f32 {v(B+i,2)}, {v(B+i,2)}, {v(B+8+i,2)}")
            for i in range(8): s(f"v_add_f32 v{B+16+i}, 1.0, v{B+16+i}")
            for i in range(8): s(f"v_rcp_f32 v{B+16+i}, v{B+16+i}")
            for i in range(4):
                s(f"v_lshlrev_b32 v{B+24+2*i}, 16, v{XR+4*n+i}\nv_and_b32 v{B+25+2*i}, 0xffff0000, v{XR+4*n+i}")
            for i in range(0, 8, 2): s(f"v_pk_fma_f32 {v(B+i,2)}, {v(B+i,2)}, {v(B+16+i,2)}, {v(B+24+i,2)}")
            for i in range(4): s(f"v_cvt_pk_bf16_f32 v{B+8+i}, v{B+2*i}, v{B+2*i+1}")
            s(f"buffer_store_dwordx4 {v(B+8,4)}, v{vSV}, {srd(SO)}, s{sT1 if n == 0 else sT2} offen {OPT.out_flag}")
        self.stamp(10); self.tr(); self.tr()
        if OPT.diag == "phase":
            A_, B_ = self.STREG[OPT.diag_n[0]], self.STREG[OPT.diag_n[1]]
            s(f"s_waitcnt lgkmcnt(0)\ns_cmp_lg_u32 s2, {OPT.diag_n[2]}\ns_cbranch_scc1 L_exit\ns_sub_u32 s{sT0}, s{B_}, s{A_}\ns_mul_i32 s{sT0}, s{sT0}, 10\ns_min_u32 s{sT0}, s{sT0}, 20000")
            s.label("L_spin2")
            s(f"s_memrealtime s[86:87]\ns_waitcnt lgkmcnt(0)\ns_sub_u32 s86, s86, s{self.STREG[10]}\ns_cmp_lt_u32 s86, s{sT0}\ns_cbranch_scc1 L_spin2")
        else: self.stamp_flush()
        if OPT.diag == "fixed":
            s.label("L_spin")
            s(f"s_memrealtime s[98:99]\ns_waitcnt lgkmcnt(0)\ns_sub_u32 s98, s98, s100\ns_cmp_lt_u32 s98, {OPT.diag_n}\ns_cbranch_scc1 L_spin")
        s.label("L_exit")
        s("s_endpgm")

def check_pointers(lines):
    from emit import Ins
    srd_lo = {r for q in (SX, SQ, SG, SU, SF, SO, SS, SH, SC) for r in (q, q+1)} | {sTP, sTP+1}
    for start in (0, next(i for i, l in enumerate(lines) if l.startswith("L_typeQ"))):
        dirty = set() if start == 0 else set(dirty_at_branch)
        for l in lines[start:]:
            t = l.strip()
            if t.startswith("s_cbranch_scc1 L_typeQ"): dirty_at_branch = set(dirty)
            if t.startswith("s_branch L_p2"): break
            if not t or t.endswith(":") or t.startswith(";") or not t.startswith("s_"): continue
            i = Ins(t)
            if i.kind == "smem" and "load" in i.mn and "s[0:1]" in t: continue
            w = {n for f, n in i.w if f == "s"}; r = {n for f, n in i.r if f == "s"}
            if w & srd_lo:
                bad = {n for n in r if (4 <= n <= 19 or n in (22, 23)) and n in dirty}
                assert not bad, f"pointer register overwritten before use: {t}"
            dirty |= {n for n in w if 4 <= n <= 19 or n in (22, 23)}

def build(over=None):
    for k, val in DEFAULTS.items(): setattr(OPT, k, val)
    for k, val in (over or {}).items():
        assert k in DEFAULTS, k
        setattr(OPT, k, {int(x): y for x, y in val.items()} if isinstance(val, dict) else val)
    g = Gen(); s = g.s
    g.prologue()
    nvm0, hist0 = s.nvm, list(s.hist)
    g.phase1("H"); g.tail()
    cH = s.count; ntrH = g.ntr
    s("s_branch L_p2")
    s.label("L_typeQ")
    s.nvm = nvm0; s.hist = hist0
    g.phase1("Q"); g.tail()
    assert g.ntr == ntrH
    s.label("L_p2")
    g.phase2()
    check_pointers(s.out)
    body = s.text() + "".join(g.tailblocks) + "L_codeend:\n"
    head = f"""; fused LayerNorm + linear attention + GLU block: one launch, 256 co-resident workgroups (generated by my gen/kern3.py)
; @launch grid=(256,1,1) block=(256,1,1) lds={LDS_BYTES}
.amdgcn_target "amdgcn-amd-amdhsa--gfx950"
.text
.globl {NAME}
.p2align 8
.type {NAME},@function
{NAME}:
"""
    foot = f""".section .rodata,"a"
.p2align 6
.amdhsa_kernel {NAME}
  .amdhsa_next_free_vgpr 512
  .amdhsa_next_free_sgpr 102
  .amdhsa_accum_offset 256
  .amdhsa_group_segment_fixed_size 0
  .amdhsa_kernarg_size 80
  .amdhsa_user_sgpr_count 2
  .amdhsa_user_sgpr_kernarg_segment_ptr 1
  .amdhsa_system_sgpr_workgroup_id_x 1
  .amdhsa_float_denorm_mode_32 3
.end_amdhsa_kernel
"""
    print(" ".join(g.log), file=sys.stderr)
    print(f"instrs {s.count} (H path {cH}) nop states {s.nops}", file=sys.stderr)
    return head + body + foot

if __name__ == "__main__":
    open(sys.argv[1], "w").write(build(json.loads(sys.argv[2]) if len(sys.argv) > 2 else {}))
```

```python
import re

REG_RE = re.compile(r"\b([vas])(\d+)\b|\b([vas])\[(\d+):(\d+)\]|\b(vcc|exec|m0)\b")
TRANS = ("v_exp_f32", "v_log_f32", "v_rcp_f32", "v_rsq_f32", "v_sqrt_f32", "v_sin_f32", "v_cos_f32")

def regs_of(op):
    out = set()
    for m in REG_RE.finditer(op):
        if m.group(1): out.add((m.group(1), int(m.group(2))))
        elif m.group(3):
            for i in range(int(m.group(4)), int(m.group(5))+1): out.add((m.group(3), i))
        else: out.add((m.group(6), 0))
    return out

def split_ops(s):
    ops, cur, d = [], "", 0
    for ch in s:
        if ch == "[": d += 1
        if ch == "]": d -= 1
        if ch == "," and d == 0: ops.append(cur.strip()); cur = ""
        else: cur += ch
    if cur.strip(): ops.append(cur.strip())
    return ops

class Ins:
    def __init__(self, text):
        self.text = text
        t = text.split(";")[0].strip()
        parts = t.split(None, 1)
        self.mn = mn = parts[0]
        ops = split_ops(parts[1]) if len(parts) > 1 else []
        self.ops = ops
        R = [regs_of(o) for o in ops]
        allr = lambda l: set().union(*l) if l else set()
        self.w, self.r = set(), set()
        self.kind = "other"; self.srcc = set(); self.srcab = set(); self.wide = False; self.data = set()
        self.dpp = any(k in t for k in ("row_shr", "row_ror", "row_bcast", "quad_perm", "row_shl", "row_mirror", "row_half_mirror"))
        self.states = 1
        if mn.startswith("v_mfma"):
            self.kind = "mfma"; self.w = R[0]; self.srcab = R[1] | R[2]; self.srcc = R[3]; self.r = self.srcab | self.srcc
            self.passes = 8 if "32x32" in mn else 4
        elif mn.startswith("v_"):
            self.kind = "trans" if mn.startswith(TRANS) else ("dot" if mn.startswith("v_dot") else "valu")
            self.w = R[0]; self.r = allr(R[1:])
            if mn.startswith(("v_fmac", "v_dot2c")) or self.dpp: self.r |= R[0]
            if mn.startswith("v_permlane"): self.w = R[0] | R[1]; self.r = R[0] | R[1]
            if mn.startswith("v_cndmask") and len(ops) == 3: self.r.add(("vcc", 0))
        elif mn.startswith("ds_read"):
            self.kind = "ds"; self.w = R[0]; self.r = allr(R[1:])
        elif mn.startswith("ds_"):
            self.kind = "ds"; self.r = allr(R)
        elif mn.startswith(("buffer_load", "global_load")):
            self.kind = "vmem"
            if re.search(r"\blds\b", t): self.r = allr(R) | {("m0", 0)}; self.isdma = True
            else: self.w = R[0]; self.r = allr(R[1:])
        elif mn.startswith(("buffer_store", "global_store", "buffer_atomic")):
            self.kind = "vmem"; self.r = allr(R)
            if "x4" in mn or "x3" in mn: self.wide = True; self.data = R[0]
        elif mn.startswith("s_load"):
            self.kind = "smem"; self.w = R[0]; self.r = allr(R[1:])
        elif mn == "s_nop":
            self.kind = "nop"; self.states = int(ops[0]) + 1
        elif mn.startswith(("s_waitcnt", "s_barrier", "s_branch", "s_cbranch", "s_endpgm", "s_setprio", "s_sleep")):
            self.kind = "ctl"
        elif mn.startswith(("s_cmp", "s_bitcmp")):
            self.kind = "salu"; self.r = allr(R)
        elif mn.startswith(("s_memtime", "s_memrealtime")):
            self.kind = "smem"; self.w = R[0]
        elif mn.startswith("s_"):
            self.kind = "salu"; self.w = R[0]; self.r = allr(R[1:])
            if "saveexec" in mn: self.w |= {("exec", 0)}
        else:
            raise ValueError("unknown instr " + text)

def isv(k): return k in ("valu", "trans", "dot")

def required(p, c):
    need = 0
    vw = {x for x in p.w if x[0] in "va"}
    sw = {x for x in p.w if x[0] in ("s", "vcc")}
    if isv(p.kind):
        if c.kind == "mfma" and vw & c.r: need = max(need, 2)
        if isv(c.kind):
            if c.mn.startswith("v_permlane") and vw & c.r: need = max(need, 2)
            if c.dpp and vw & c.r: need = max(need, 2)
            if c.mn.startswith(("v_readfirstlane", "v_readlane")) and vw & c.r: need = max(need, 1)
            if sw & c.r: need = max(need, 2)
            if p.kind == "trans" and c.kind != "trans" and vw & c.r: need = max(need, 1)
            if p.kind == "dot" and vw & (c.r | c.w):
                if not (c.mn == p.mn and not (vw & (c.r - c.w))): need = max(need, 3)
        if c.kind == "vmem" and sw & c.r: need = max(need, 5)
        if c.kind in ("salu", "smem") and sw & c.r: need = max(need, 2)
        if p.kind == "dot" and c.kind in ("vmem", "ds", "mfma") and vw & c.r: need = max(need, 3)
    if p.kind == "mfma":
        big = 12 if p.passes == 8 else 8
        if c.kind == "mfma":
            if p.w & c.srcab: need = max(need, big)
            if p.w & c.srcc and not (p.w == c.srcc and p.passes == c.passes): need = max(need, big-2)
            if p.w & c.w and not (p.w == c.srcc): need = max(need, big-2)
        elif isv(c.kind) or c.kind in ("vmem", "ds"):
            if p.w & (c.r | c.w): need = max(need, big)
        if isv(c.kind) and p.srcc & c.w: need = max(need, 7 if p.passes == 8 else 3)
    if p.kind == "salu" and ("m0", 0) in p.w and c.kind == "vmem" and ("m0", 0) in c.r: need = max(need, 1)
    if p.wide and p.data & c.w: need = max(need, 2)
    return need

class Stream:
    def __init__(self):
        self.out = []
        self.hist = []
        self.nvm = 0; self.nlg = 0
        self.nops = 0
        self.count = 0
        self.lab = 0
        self.units = 0
        self.vmlog = []
        self.unc = []
        self.exact = True
        self.costfn = lambda i: 1
    def raw(self, text):
        self.out.append(text)
    def label(self, name, reset=True):
        self.out.append(name + ":")
    def newlabel(self, p="L"):
        self.lab += 1
        return f"{p}_{self.lab}"
    def comment(self, t): self.out.append("    ; " + t)
    def __call__(self, text):
        last = None
        for l in text.split("\n"):
            if l.strip(): last = self.emit(l.strip())
        return last
    def pad_needed(self, ins):
        dist = 0; need = 0
        for p in reversed(self.hist):
            need = max(need, required(p, ins) - dist)
            dist += p.states
            if dist >= 20: break
        return need
    def emit(self, text):
        ins = Ins(text)
        need = self.pad_needed(ins)
        if need > 0:
            n = Ins(f"s_nop {need-1}")
            self.out.append(f"    s_nop {need-1}"); self.hist.append(n); self.nops += need; self.units += need
        self.out.append("    " + text)
        self.hist.append(ins); self.hist = self.hist[-24:]
        self.count += 1; self.units += self.costfn(ins)
        if ins.kind == "vmem": self.nvm += 1; ins.vmseq = self.nvm; self.vmlog.append(ins)
        if ins.kind == "ds": self.nlg += 1; ins.lgseq = self.nlg
        return ins
    def wait(self, vm=None, lg=None):
        parts = []
        if vm is not None and not isinstance(vm, int) and self.exact:
            pos = self.vmlog.index(vm)
            extra = {}
            for o in self.unc:
                if o.cls and o is not vm and self.vmlog.index(o) > pos and o.cls != getattr(vm, "cls", None): extra[o.cls] = extra.get(o.cls, 0) + 1
            same = sum(1 for o in self.unc if o.cls and o.cls == getattr(vm, "cls", None) and self.vmlog.index(o) > pos)
            if extra or same:
                base = self.nvm - vm.vmseq + same
                lgs = "" if lg is None else f" lgkmcnt({min(lg if isinstance(lg, int) else self.nlg - lg.lgseq, 15)})"
                end = self.newlabel("L_we")
                def rec(cl, n, last):
                    if not cl:
                        self.emit(f"s_waitcnt vmcnt({min(n, 63)}){lgs}")
                        if not last: self.emit(f"s_branch {end}")
                        return
                    lab = self.newlabel("L_wc")
                    self.emit(cl[0]); self.emit(f"s_cbranch_scc1 {lab}")
                    rec(cl[1:], n + extra[cl[0]], False)
                    self.label(lab)
                    rec(cl[1:], n, last)
                rec(sorted(extra), base, True)
                self.label(end)
                return self.hist[-1]
        if vm is not None:
            n = vm if isinstance(vm, int) else self.nvm - vm.vmseq
            parts.append(f"vmcnt({min(n,63)})")
        if lg is not None:
            n = lg if isinstance(lg, int) else self.nlg - lg.lgseq
            parts.append(f"lgkmcnt({min(n,15)})")
        return self.emit("s_waitcnt " + " ".join(parts))
    def cond(self, skip_test, body, cls=None):
        lab = self.newlabel("L_sk")
        self(skip_test)
        self(f"s_cbranch_scc1 {lab}")
        n0 = self.nvm; k0 = len(self.vmlog)
        body()
        ops = self.vmlog[k0:]
        self.nvm = n0
        for o in ops:
            o.vmseq = n0
            if not hasattr(o, 'cls'): o.cls = skip_test if cls else None; self.unc.append(o)
        self.label(lab)
        return ops[-1] if ops else None
    def flush_hazards(self):
        self.emit("s_nop 11")
    def text(self):
        return "\n".join(self.out) + "\n"
```
